```python
import torch

def _softmax(x, axis=-1):
    return torch.softmax(x, dim=axis)
def _gelu(x):
    return torch.nn.functional.gelu(x, approximate="tanh")
def _silu(x):
    return torch.nn.functional.silu(x)
def _sigmoid(x):
    return torch.sigmoid(x)
def _layernorm(x, axis=-1, eps=1e-5):
    m = x.mean(dim=axis, keepdim=True)
    v = x.var(dim=axis, keepdim=True, unbiased=False)
    return (x - m) / torch.sqrt(v + eps)
def _scatter_add(tgt, idx, src, axis=0):
    return tgt.clone().index_add_(axis, idx, src)
def _segment_sum(src, seg, n):
    out = torch.zeros((n,) + src.shape[1:], dtype=src.dtype)
    return out.index_add_(0, seg, src)
def _pad(x, pw):
    flat = tuple(v for pair in reversed(pw) for v in pair)
    return torch.nn.functional.pad(x, flat)

kernel_name = 'interleave_layers__spectral_gfnet__ssm_conv_s5__prompt'

def setup_inputs():

    _w = (lambda a: (lambda t: t.to(torch.bfloat16) if t.is_floating_point() else t)(torch.as_tensor(a)))
    def _A_setup():
        B, S, D = 1, 2048, 448
        Df = D // 2 + 1
        return {
            "x": _w((lambda *s: torch.randn(*s, dtype=torch.bfloat16) * 0.05)(B, S, D)),
            "w_r": _w((lambda *s: torch.randn(*s, dtype=torch.bfloat16) * 1.6)(S, Df) * 0.02),
            "w_i": _w((lambda *s: torch.randn(*s, dtype=torch.bfloat16) * 1.6)(S, Df) * 0.02),
        }
    _A_in = _A_setup()

    def _B_setup():
        B, S, D = 1, 2048, 448
        P = D
        Lambda_re = -0.5 * (lambda _x: torch.exp(torch.as_tensor(_x)))((lambda *s: torch.randn(*s, dtype=torch.bfloat16) * 0.2)(P))
        Lambda_im = (lambda *s: torch.randn(*s, dtype=torch.bfloat16) * 0.8)(P) * 1.0
        B_re = (lambda *s: torch.randn(*s, dtype=torch.bfloat16) * 0.2)(P, D) * (D ** -0.5)
        B_im = (lambda *s: torch.randn(*s, dtype=torch.bfloat16) * 0.2)(P, D) * (D ** -0.5)
        C_re = (lambda *s: torch.randn(*s, dtype=torch.bfloat16) * 0.2)(D, P) * (P ** -0.5)
        C_im = (lambda *s: torch.randn(*s, dtype=torch.bfloat16) * 0.2)(D, P) * (P ** -0.5)
        log_dt = (lambda *s: torch.randn(*s, dtype=torch.bfloat16) * 0.2)(P) * 0.3 - 2.0
        Dskip = (lambda *s: torch.randn(*s, dtype=torch.bfloat16) * 0.05)(D)
        return {
            "x": _w((lambda *s: torch.randn(*s, dtype=torch.bfloat16) * 0.05)(B, S, D)),
            "Lambda_re": _w(Lambda_re),
            "Lambda_im": _w(Lambda_im),
            "B_re": _w(B_re),
            "B_im": _w(B_im),
            "C_re": _w(C_re),
            "C_im": _w(C_im),
            "log_dt": _w(log_dt),
            "Dskip": _w(Dskip),
        }
    _B_in = _B_setup()

    return {
        "A_x": _A_in["x"],
        "A_w_r": _A_in["w_r"],
        "A_w_i": _A_in["w_i"],
        "B_x": _B_in["x"],
        "B_Lambda_re": _B_in["Lambda_re"],
        "B_Lambda_im": _B_in["Lambda_im"],
        "B_B_re": _B_in["B_re"],
        "B_B_im": _B_in["B_im"],
        "B_C_re": _B_in["C_re"],
        "B_C_im": _B_in["C_im"],
        "B_log_dt": _B_in["log_dt"],
        "B_Dskip": _B_in["Dskip"],
    }

def reference(A_x, A_w_r, A_w_i, B_x, B_Lambda_re, B_Lambda_im, B_B_re, B_B_im, B_C_re, B_C_im, B_log_dt, B_Dskip):
    def _A_ref(x, w_r, w_i):
        B, S, D = x.shape
        X = (lambda x, axes=(-2,-1): torch.fft.rfft2(x.float(), dim=axes))(x, axes=(-2, -1))
        W = w_r + 1j * w_i
        X = X * W
        y = (lambda x, s, axes=(-2,-1): torch.fft.irfft2(x, s=s, dim=axes).to(torch.bfloat16))(X, (S, D), axes=(-2, -1))
        return y

    def _B_ref(x, Lambda_re, Lambda_im, B_re, B_im, C_re, C_im, log_dt, Dskip):
        Bsz, L, H = x.shape
        Lam = Lambda_re + 1j * Lambda_im
        Bmat = B_re + 1j * B_im
        Cmat = C_re + 1j * C_im
        dt = torch.exp(log_dt)
        Lam_bar = torch.exp(dt * Lam)
        B_bar = ((Lam_bar - 1.0) / Lam)[:, None] * Bmat
        Bu = torch.einsum("bld,pd->blp", x + 0j, B_bar)
        h = torch.zeros_like(Bu[:, 0, :])
        hs = []
        for t in range(L):
            h = Lam_bar[None, :] * h + Bu[:, t, :]
            hs.append(h)
        hseq = torch.stack(hs, 1)
        y = 2.0 * torch.einsum("blp,dp->bld", hseq, Cmat).real + x * Dskip[None, None, :]
        return y

    x = A_x
    x = x + _A_ref(_layernorm(x, axis=-1), A_w_r, A_w_i)
    x = x + _B_ref(_layernorm(x, axis=-1), B_Lambda_re, B_Lambda_im, B_B_re, B_B_im, B_C_re, B_C_im, B_log_dt, B_Dskip)
    x = x + _A_ref(_layernorm(x, axis=-1), A_w_r, A_w_i)
    x = x + _B_ref(_layernorm(x, axis=-1), B_Lambda_re, B_Lambda_im, B_B_re, B_B_im, B_C_re, B_C_im, B_log_dt, B_Dskip)
    return x
```

```python
import re

def v(i, n=1):
    return f"v{i}" if n == 1 else f"v[{i}:{i+n-1}]"
def a(i, n=1):
    return f"a{i}" if n == 1 else f"a[{i}:{i+n-1}]"
def s(i, n=1):
    return f"s{i}" if n == 1 else f"s[{i}:{i+n-1}]"

class Alloc:
    def __init__(self, lo, hi):
        self.lo, self.hi = lo, hi
        self.used = set()
        self.hwm = lo
    def get(self, n=1, align=None):
        if align is None:
            align = 1 if n == 1 else (2 if n == 2 else 4)
        i = self.lo
        while True:
            i = (i + align - 1) // align * align
            if i + n > self.hi:
                raise RuntimeError(f"out of registers (need {n})")
            if all((i + k) not in self.used for k in range(n)):
                for k in range(n): self.used.add(i + k)
                self.hwm = max(self.hwm, i + n)
                return i
            i += 1
    def free(self, i, n=1):
        for k in range(n):
            assert (i + k) in self.used, (i, n)
            self.used.remove(i + k)

_reg_re = re.compile(r"^-?\|?(?:abs\()?-?([vas])(?:(\d+)|\[(\d+):(\d+)\])\)?\|?$")
def parse_reg(op):
    op = op.strip()
    if op in ("vcc",): return [("s", "vcc_lo"), ("s", "vcc_hi")]
    if op in ("vcc_lo", "vcc_hi", "m0", "exec_lo", "exec_hi"): return [("s", op)]
    if op == "exec": return [("s", "exec_lo"), ("s", "exec_hi")]
    m = _reg_re.match(op)
    if not m: return []
    k = m.group(1)
    if m.group(2) is not None: return [(k, int(m.group(2)))]
    return [(k, i) for i in range(int(m.group(3)), int(m.group(4)) + 1)]

TRANS = ("v_exp_f32", "v_log_f32", "v_rcp_f32", "v_rsq_f32", "v_sqrt_f32", "v_sin_f32", "v_cos_f32", "v_rcp_iflag_f32")

class Ins:
    __slots__ = ("text", "mn", "ops", "mods", "rd", "wr", "kind", "passes", "srcc", "srcab", "is_label", "dpp", "sgpr_rd_vmem", "store_data", "lanesel", "target")
    def __init__(self, text):
        self.text = text
        t = text.split(";")[0].strip()
        self.is_label = t.endswith(":")
        self.rd = set(); self.wr = set(); self.kind = "other"; self.passes = 0
        self.srcc = set(); self.srcab = set(); self.dpp = False; self.store_data = set(); self.lanesel = set(); self.target = None
        self.mn = ""; self.ops = []; self.mods = ""
        if self.is_label or not t or t.startswith("."):
            self.kind = "label" if self.is_label else "dir"
            return
        parts = t.split(None, 1)
        self.mn = mn = parts[0]
        rest = parts[1] if len(parts) > 1 else ""
        ops = []; cur = ""; depth = 0
        for ch in rest:
            if ch in "[(": depth += 1
            if ch in "])": depth -= 1
            if ch == "," and depth == 0: ops.append(cur.strip()); cur = ""
            else: cur += ch
        if cur.strip(): ops.append(cur.strip())
        if ops:
            w = ops[-1].split(None, 1)
            ops[-1] = w[0]
            self.mods = w[1] if len(w) > 1 else ""
        self.ops = ops
        R = lambda i: set(parse_reg(ops[i])) if i < len(ops) else set()
        base = re.sub(r"_(e32|e64|dpp|sdwa)$", "", mn)
        if mn.startswith("v_mfma"):
            self.kind = "mfma"
            self.passes = 8 if "32x32x16" in mn else (4 if "16x16x32" in mn else None)
            assert self.passes, mn
            self.wr = R(0); self.srcab = R(1) | R(2); self.srcc = R(3); self.rd = self.srcab | self.srcc
        elif mn.startswith("v_"):
            self.kind = "valu"
            if base in TRANS: self.kind = "trans"
            if base.startswith("v_dot2"): self.kind = "dot"
            self.dpp = mn.endswith("_dpp") or "quad_perm" in self.mods or "row_" in self.mods
            if base.startswith("v_cmp"):
                self.wr = R(0); self.rd = R(1) | R(2)
                assert not base.startswith("v_cmpx"), "avoid cmpx"
            elif base in ("v_readfirstlane_b32", "v_readlane_b32"):
                self.kind = "readlane"; self.wr = R(0); self.rd = R(1) | R(2); self.lanesel = R(2)
            elif base == "v_writelane_b32":
                self.wr = R(0); self.rd = R(0) | R(1) | R(2); self.lanesel = R(2)
            elif base.startswith("v_permlane"):
                self.kind = "permlane"; self.wr = R(0) | R(1); self.rd = R(0) | R(1)
            elif base in ("v_add_co_u32", "v_sub_co_u32", "v_subrev_co_u32"):
                self.wr = R(0) | R(1); self.rd = R(2) | R(3)
            elif base in ("v_addc_co_u32", "v_subb_co_u32"):
                self.wr = R(0) | R(1); self.rd = R(2) | R(3) | R(4)
            elif base in ("v_fmac_f32", "v_dot2c_f32_bf16", "v_pk_fmac_f16"):
                self.wr = R(0); self.rd = R(0) | R(1) | R(2)
            elif base == "v_cndmask_b32":
                self.wr = R(0); self.rd = R(1) | R(2) | (R(3) if len(ops) > 3 else set(parse_reg("vcc")))
            elif base == "v_nop":
                pass
            else:
                self.wr = R(0)
                for i in range(1, len(ops)): self.rd |= R(i)
                if self.dpp or "UNUSED_PRESERVE" in self.mods: self.rd |= R(0)
        elif mn.startswith("ds_"):
            self.kind = "ds"
            if mn.startswith("ds_read") or mn.startswith("ds_bpermute") or mn.startswith("ds_permute") or mn.startswith("ds_swizzle"):
                self.wr = R(0)
                for i in range(1, len(ops)): self.rd |= R(i)
                if "d16" in mn: self.rd |= R(0)
            else:
                for i in range(len(ops)): self.rd |= R(i)
        elif mn.startswith("buffer_"):
            self.kind = "vmem"
            lds = re.search(r"\blds\b", self.mods) is not None
            if mn.startswith("buffer_load") and lds:
                self.kind = "vmem_lds"
                for i in range(len(ops)): self.rd |= R(i)
                self.rd.add(("s", "m0"))
            elif mn.startswith("buffer_load"):
                self.wr = R(0)
                for i in range(1, len(ops)): self.rd |= R(i)
                if "d16" in mn: self.rd |= R(0)
            elif mn.startswith("buffer_store") or mn.startswith("buffer_atomic"):
                for i in range(len(ops)): self.rd |= R(i)
                if "x3" in mn or "x4" in mn: self.store_data = R(0)
                if mn.startswith("buffer_atomic") and "sc0" in self.mods: self.wr = R(0)
            else:
                self.kind = "vmem_misc"
        elif mn.startswith("global_"):
            self.kind = "vmem"
            if mn.startswith("global_load_lds"):
                self.kind = "vmem_lds"
                for i in range(len(ops)): self.rd |= R(i)
                self.rd.add(("s", "m0"))
            elif mn.startswith("global_load"):
                self.wr = R(0)
                for i in range(1, len(ops)): self.rd |= R(i)
            else:
                for i in range(len(ops)): self.rd |= R(i)
                if "x3" in mn or "x4" in mn: self.store_data = R(1)
        elif mn.startswith("s_"):
            self.kind = "salu"
            if mn.startswith("s_load") or mn.startswith("s_buffer_load") or mn in ("s_memtime", "s_memrealtime"):
                self.kind = "smem"; self.wr = R(0)
                for i in range(1, len(ops)): self.rd |= R(i)
            elif mn in ("s_waitcnt", "s_barrier", "s_nop", "s_endpgm", "s_sleep", "s_setprio"):
                self.kind = mn
            elif mn.startswith("s_cbranch") or mn == "s_branch":
                self.kind = "branch"; self.target = ops[0]
                if "vcc" in mn: self.rd = set(parse_reg("vcc"))
            elif mn.startswith("s_cmp") or mn.startswith("s_bitcmp"):
                for i in range(len(ops)): self.rd |= R(i)
            elif "saveexec" in mn:
                self.wr = R(0) | set(parse_reg("exec")); self.rd = R(1) | set(parse_reg("exec"))
            else:
                self.wr = R(0)
                for i in range(1, len(ops)): self.rd |= R(i)
                if mn in ("s_addk_i32", "s_mulk_i32"): self.rd |= R(0)
        else:
            raise ValueError("unknown instruction: " + text)
    def states(self):
        if self.kind in ("label", "dir"): return 0
        if self.kind == "s_nop": return int(self.ops[0], 0) + 1
        return 1

VALU_KINDS = ("valu", "trans", "dot", "readlane", "permlane")
def need(prod, cons):
    n = 0
    pk, ck = prod.kind, cons.kind
    pw_v = {r for r in prod.wr if r[0] in "va"}
    pw_s = {r for r in prod.wr if r[0] == "s"}
    if pk in VALU_KINDS:
        if ck == "mfma" and (pw_v & cons.rd): n = max(n, 2)
        if pk == "trans" and ck in VALU_KINDS + ("mfma",) and ck != "trans" and (pw_v & cons.rd): n = max(n, 1)
        if pk == "trans" and ck == "trans" and (pw_v & cons.rd): n = max(n, 1)
        if pk == "dot" and ck in VALU_KINDS + ("mfma", "ds", "vmem") and (pw_v & (cons.rd | cons.wr)):
            same = (cons.mn == prod.mn)
            if same and ck == "dot":
                ab = set()
                for i in (1, 2): ab |= set(parse_reg(cons.ops[i]))
                if pw_v & ab: n = max(n, 3)
            else: n = max(n, 3)
        if ck == "readlane" and (pw_v & cons.rd): n = max(n, 1)
        if ck == "permlane" and (pw_v & cons.rd): n = max(n, 2)
        if cons.dpp and (pw_v & cons.rd): n = max(n, 2)
        if pw_s:
            if ck in VALU_KINDS + ("mfma",) and (pw_s & cons.rd): n = max(n, 2)
            if cons.lanesel & pw_s: n = max(n, 4)
            if ck in ("vmem", "vmem_lds") and (pw_s & cons.rd): n = max(n, 5)
            if ck in ("salu", "branch", "smem") and (pw_s & cons.rd): n = max(n, 1)
        if ("sdwa" in prod.mn and "dst_sel:DWORD" not in prod.mods) and ck in VALU_KINDS and (pw_v & (cons.rd | cons.wr)): n = max(n, 1)
    if pk == "mfma":
        big = prod.passes == 8
        D = prod.wr
        if ck == "mfma":
            if D & cons.srcab: n = max(n, 12 if big else 8)
            if D & cons.srcc:
                if not (cons.srcc == D and cons.passes == prod.passes): n = max(n, 10 if big else 6)
            elif D & cons.wr: n = max(n, 12 if big else 8)
        elif ck in VALU_KINDS + ("ds", "vmem", "vmem_lds"):
            if D & (cons.rd | cons.wr): n = max(n, 12 if big else 8)
        if ck in VALU_KINDS and (prod.srcc & cons.wr): n = max(n, 7 if big else 3)
        if ck in ("ds", "vmem") and (prod.srcc & cons.wr): n = max(n, 7 if big else 3)
    if pk == "salu" and ("s", "m0") in prod.wr and ck == "vmem_lds": n = max(n, 1)
    if prod.store_data:
        if ck in VALU_KINDS + ("mfma",) and (prod.store_data & cons.wr): n = max(n, 2)
        elif prod.store_data & cons.wr: n = max(n, 1)
    return n

WINDOW = 14
def fix_hazards(lines):
    ins = [Ins(l) for l in lines]
    labels = {}
    for i, x in enumerate(ins):
        if x.is_label: labels[x.text.split(";")[0].strip()[:-1]] = i
    out = []
    def required(hist, cons):
        d = 0; req = 0
        for p in reversed(hist):
            if p.kind in ("label", "dir"): continue
            r = need(p, cons)
            if r > d: req = max(req, r - d)
            d += p.states()
            if d >= WINDOW: break
        return req
    def nop(k):
        res = []
        while k > 0:
            m = min(k, 16); res.append(Ins(f"s_nop {m-1}")); k -= m
        return res
    for i, x in enumerate(ins):
        if x.kind in ("label", "dir"):
            out.append(x); continue
        hist = out[-40:]
        r = required(hist, x)
        if r: out.extend(nop(r))
        if x.kind == "branch" and x.target in labels:
            hist2 = out[-40:] + [x]
            extra = 0; d = 0; j = labels[x.target]
            sim = list(hist2)
            while j < len(ins) and d < WINDOW:
                y = ins[j]; j += 1
                if y.kind in ("label", "dir"): continue
                rr = required(sim, y)
                dd = d; req = 0
                for p in reversed(hist2):
                    if p.kind in ("label", "dir"): continue
                    q = need(p, y)
                    if q > dd: req = max(req, q - dd)
                    dd += p.states()
                    if dd >= WINDOW: break
                extra = max(extra, req)
                d += y.states()
                if y.kind == "branch" and y.mn == "s_branch": break
                if y.kind == "s_endpgm": break
            if extra: out.extend(nop(extra))
        out.append(x)
    return out

def check_waits(ins, name=""):
    vm = []
    lg = []
    errs = []
    def touch(x):
        regs = x.rd | x.wr
        for q in vm:
            if q & regs: errs.append(f"{name}: vmcnt hazard at '{x.text.strip()}' regs {sorted(q & regs, key=str)[:4]}")
        for k, q in lg:
            if q & regs:
                if k == "ds" and x.kind == "ds" and not (q & x.rd - x.wr): continue
                errs.append(f"{name}: lgkmcnt hazard at '{x.text.strip()}' regs {sorted(q & regs, key=str)[:4]}")
    for x in ins:
        if x.kind in ("label", "dir"): continue
        if x.kind == "s_waitcnt":
            t = x.text.split(";")[0]
            m = re.search(r"vmcnt\((\d+)\)", t)
            if m:
                n = int(m.group(1))
                while len(vm) > n: vm.pop(0)
            m = re.search(r"lgkmcnt\((\d+)\)", t)
            if m:
                n = int(m.group(1))
                if n == 0: lg.clear()
                else:
                    if any(k == "smem" for k, _ in lg): errs.append(f"{name}: counted lgkmcnt with smem outstanding")
                    while len(lg) > n: lg.pop(0)
            continue
        if x.kind == "s_endpgm":
            vm.clear(); lg.clear(); continue
        touch(x)
        if x.kind in ("vmem", "vmem_lds", "vmem_misc"):
            vm.append(set(x.wr))
            if len(vm) > 63: errs.append(f"{name}: >63 vmem outstanding at '{x.text.strip()}'")
        elif x.kind == "ds":
            lg.append(("ds", set(x.wr)))
        elif x.kind == "smem":
            lg.append(("smem", set(x.wr)))
    return errs

class Kernel:
    def __init__(self, name, nv_max=256, na_max=256):
        self.name = name; self.lines = []
        self.V = Alloc(1, nv_max); self.A = Alloc(0, na_max); self.S = Alloc(4, 100)
        self.uid = 0
    def __call__(self, text):
        for l in text.split("\n"):
            l = l.strip()
            if l: self.lines.append(l)
    def label(self, base):
        self.uid += 1
        return f"L_{self.name}_{base}{self.uid}"
    def finish(self):
        ins = fix_hazards(self.lines)
        errs = check_waits(ins, self.name)
        if errs:
            raise RuntimeError("\n".join(errs[:20]))
        return [x.text for x in ins]

def descriptor(name, nv, na, ns):
    acc = max(4, (nv + 3) // 4 * 4)
    nfv = acc + na if na else nv
    return f""".p2align 6
.amdhsa_kernel {name}
  .amdhsa_next_free_vgpr {nfv}
  .amdhsa_next_free_sgpr {ns}
  .amdhsa_accum_offset {acc}
  .amdhsa_group_segment_fixed_size 0
  .amdhsa_kernarg_size 120
  .amdhsa_user_sgpr_count 2
  .amdhsa_user_sgpr_kernarg_segment_ptr 1
  .amdhsa_system_sgpr_workgroup_id_x 1
.end_amdhsa_kernel"""
```

```python
from asmlib import *
from layout import *
import numpy as np

def bf16bits(x):
    u = np.float32(x).view(np.uint32)
    return int((int(u) + 0x7fff + ((int(u) >> 16) & 1)) >> 16)
def f32bits(x):
    return int(np.float32(x).view(np.uint32))
def fhex(x):
    return "0x%08x" % f32bits(x)

def srd(k, dst, base, nbytes):
    k(f"""s_mov_b32 s{dst}, s{base}
    s_and_b32 s{dst+1}, s{base+1}, 0xffff
    s_mov_b32 s{dst+2}, {nbytes:#x}
    s_mov_b32 s{dst+3}, 0x20000""")

def table_ptr(k, dst, sym):
    k(f"""s_getpc_b64 s[{dst}:{dst+1}]
    s_add_u32 s{dst}, s{dst}, {sym}@rel32@lo+4
    s_addc_u32 s{dst+1}, s{dst+1}, {sym}@rel32@hi+12""")

def decode_cj(k, s_id, s_c, s_j, s_t):
    k(f"""s_lshr_b32 s{s_t}, s{s_id}, 3
    s_mul_i32 s{s_c}, s{s_t}, 37
    s_lshr_b32 s{s_c}, s{s_c}, 8
    s_mul_i32 s{s_j}, s{s_c}, 7
    s_sub_u32 s{s_j}, s{s_t}, s{s_j}
    s_lshl_b32 s{s_c}, s{s_c}, 3
    s_and_b32 s{s_t}, s{s_id}, 7
    s_add_u32 s{s_c}, s{s_c}, s{s_t}""")

def div7(k, s_q, s_r, s_x):
    k(f"""s_mul_i32 s{s_q}, s{s_x}, 147
    s_lshr_b32 s{s_q}, s{s_q}, 10
    s_mul_i32 s{s_r}, s{s_q}, 7
    s_sub_u32 s{s_r}, s{s_x}, s{s_r}""")
for _x in range(100): assert (_x*147) >> 10 == _x//7

def emit_lam(k, v_lre, v_lim, v_ldt, v_or, v_oi, t0, t1):
    k(f"""v_lshlrev_b32 v{v_lre}, 16, v{v_lre}
    v_lshlrev_b32 v{v_lim}, 16, v{v_lim}
    v_lshlrev_b32 v{v_ldt}, 16, v{v_ldt}
    v_mul_f32 v{t0}, {fhex(1.4426950408889634)}, v{v_ldt}
    v_exp_f32 v{t0}, v{t0}
    v_cvt_pk_bf16_f32 v{t0}, v{t0}, v{t0}
    v_and_b32 v{t0}, 0xffff0000, v{t0}
    v_mul_f32 v{t1}, v{t0}, v{v_lre}
    v_mul_f32 v{t1}, {fhex(1.4426950408889634)}, v{t1}
    v_exp_f32 v{t1}, v{t1}
    v_mul_f32 v{t0}, v{t0}, v{v_lim}
    v_mul_f32 v{t0}, {fhex(0.15915494309189535)}, v{t0}
    v_fract_f32 v{t0}, v{t0}
    v_cos_f32 v{v_or}, v{t0}
    v_sin_f32 v{v_oi}, v{t0}
    v_mul_f32 v{v_or}, v{v_or}, v{t1}
    v_mul_f32 v{v_oi}, v{v_oi}, v{t1}""")

def q_tables():
    L = []
    for i in range(448): L.append(f".set qc{i},{bf16bits(np.sqrt(2/448)*np.cos(2*np.pi*i/448))}")
    L.append(f".set qc448,{bf16bits(1/np.sqrt(448))}")
    L.append(f".set qc449,{bf16bits(-1/np.sqrt(448))}")
    L.append(""".altmacro
.macro qe A1,A2,A3,A4,A5,A6,A7,A8
.short qc\\A1,qc\\A2,qc\\A3,qc\\A4,qc\\A5,qc\\A6,qc\\A7,qc\\A8
.endm
.p2align 8
.type tab_qj,@object
tab_qj:
.set jt,0
.rept 28
.set ks,0
.rept 14
.set ln,0
.rept 64
.set jj,jt*16+(ln&15)
.set dd,32*ks+8*(ln>>4)
.if jj==0
qe 448,448,448,448,448,448,448,448
.elseif jj==1
qe 448,449,448,449,448,449,448,449
.else
.set ff,jj>>1
.set bb,ff*dd+112*(jj&1)
qe %(bb%448),%((bb+ff)%448),%((bb+2*ff)%448),%((bb+3*ff)%448),%((bb+4*ff)%448),%((bb+5*ff)%448),%((bb+6*ff)%448),%((bb+7*ff)%448)
.endif
.set ln,ln+1
.endr
.set ks,ks+1
.endr
.set jt,jt+1
.endr
.p2align 8
.type tab_qd,@object
tab_qd:
.set jt,0
.rept 28
.set ks,0
.rept 14
.set ln,0
.rept 64
.set dd,jt*16+(ln&15)
.set ff,16*ks+4*(ln>>4)
.set bb,ff*dd
.if ff==0
qe 448,%(448+(dd&1)),%(dd%448),%((dd+112)%448),%((2*dd)%448),%((2*dd+112)%448),%((3*dd)%448),%((3*dd+112)%448)
.else
qe %(bb%448),%((bb+112)%448),%((bb+dd)%448),%((bb+dd+112)%448),%((bb+2*dd)%448),%((bb+2*dd+112)%448),%((bb+3*dd)%448),%((bb+3*dd+112)%448)
.endif
.set ln,ln+1
.endr
.set ks,ks+1
.endr
.set jt,jt+1
.endr
.noaltmacro""")
    return "\n".join(L)
```

```python
from common import *

QSTR = 14400
N_A, N_B, N_D, N_C, N_W = 224, 49, 49, 98, 64
K1_GRID = N_A + N_B + N_D + N_C + N_W
K1_LDS = 4 * QSTR

def prologue_ptrs(k):
    k("""s_load_dwordx16 s[16:31], s[0:1], 0
    s_load_dwordx8 s[32:39], s[0:1], 64
    s_load_dwordx4 s[40:43], s[0:1], 96
    s_load_dwordx2 s[44:45], s[0:1], 112""")

def wave_lane(k, s_w, v_lane, vt):
    k(f"""v_lshrrev_b32 v{vt}, 6, v0
    v_and_b32 v{v_lane}, 63, v0
    v_readfirstlane_b32 s{s_w}, v{vt}""")

def q_dma_issue(k, i, v_l16, s_qoff, s_lds):
    if i % 4 == 0:
        if i == 0:
            k(f"s_mov_b32 m0, s{s_lds}")
        else:
            k(f"s_add_u32 s{s_qoff}, s{s_qoff}, 4096\ns_add_u32 m0, m0, 4096")
    k(f"buffer_load_dwordx4 v{v_l16}, s[52:55], s{s_qoff} offen offset:{(i % 4) * 1024} lds")

def job_a(k):
    S_C, S_J, S_T, S_W, S_Q, S_L = 4, 5, 6, 7, 8, 9
    lane, l16, vx, t0, t1, t2 = 1, 2, 3, 4, 5, 6
    XF = 8
    ACC = 64
    BF = 80
    decode_cj(k, 2, S_C, S_J, S_T)
    wave_lane(k, S_W, lane, t0)
    table_ptr(k, 10, "tab_qj")
    srd(k, 52, 10, 28 * 14336)
    k(f"""v_lshlrev_b32 v{l16}, 4, v{lane}
    s_lshl_b32 s{S_Q}, s{S_J}, 2
    s_add_u32 s{S_Q}, s{S_Q}, s{S_W}
    s_mul_i32 s{S_Q}, s{S_Q}, 14336
    s_mul_i32 s{S_L}, s{S_W}, {QSTR}
    v_and_b32 v{t0}, 15, v{lane}
    v_lshrrev_b32 v{t1}, 4, v{lane}
    s_lshl_b32 s12, s{S_C}, 6
    s_lshl_b32 s13, s{S_W}, 4
    s_add_u32 s12, s12, s13          ; row0 = 64c+16w
    v_add_u32 v{t2}, s12, v{t0}
    v_mul_u32_u24 v{vx}, 896, v{t2}
    v_lshl_add_u32 v{vx}, v{t1}, 4, v{vx}""")
    for i in range(7): q_dma_issue(k, i, l16, S_Q, S_L)
    k("s_waitcnt lgkmcnt(0)")
    srd(k, 56, 16, 2048 * 896)
    srd(k, 48, 44, WS_BYTES)
    for i in range(7): k(f"buffer_load_dwordx4 {v(XF+4*i,4)}, v{vx}, s[56:59], 0 offen offset:{64*i}")
    for i in range(7, 14): q_dma_issue(k, i, l16, S_Q, S_L)
    for i in range(7, 14): k(f"buffer_load_dwordx4 {v(XF+4*i,4)}, v{vx}, s[56:59], 0 offen offset:{64*i}")
    k(f"""v_mov_b32 v112, 0
    v_mov_b32 v113, 0
    v_mov_b32 v114, 0
    v_mov_b32 v115, 0
    v_lshlrev_b32 v116, 4, v0
    s_lshl_b32 s14, s2, 11
    s_add_u32 s14, s14, {E1}
    s_cmp_lt_u32 s{S_W}, 2""")
    skip = k.label("noz")
    k(f"""s_cbranch_scc0 {skip}
    buffer_store_dwordx4 v[112:115], v116, s[48:51], s14 offen
    s_waitcnt vmcnt(0)
    {skip}:""")
    def ldb(ks, buf):
        for nt in range(4):
            k(f"ds_read_b128 {v(BF+16*buf+4*nt,4)}, v{l16} offset:{nt*QSTR+ks*1024}")
    k("s_waitcnt vmcnt(14)\ns_barrier")
    ldb(0, 0)
    for ks in range(14):
        if ks == 6:
            k("s_waitcnt vmcnt(0)\ns_barrier")
        if ks + 1 < 14:
            ldb(ks + 1, (ks + 1) & 1)
            k("s_waitcnt lgkmcnt(4)")
        else:
            k("s_waitcnt lgkmcnt(0)")
        for nt in range(4):
            c = "0" if ks == 0 else v(ACC+4*nt, 4)
            k(f"v_mfma_f32_16x16x32_bf16 {v(ACC+4*nt,4)}, {v(XF+4*ks,4)}, {v(BF+16*(ks&1)+4*nt,4)}, {c}")
    k(f"""s_lshl_b32 s13, s{S_J}, 18
    s_lshl_b32 s14, s12, 1
    s_add_u32 s13, s13, s14
    s_add_u32 s13, s13, {X0T}
    v_lshlrev_b32 v{t2}, 12, v{t0}
    v_lshl_add_u32 v{t2}, v{t1}, 3, v{t2}""")
    for nt in range(4):
        k(f"""v_cvt_pk_bf16_f32 v{BF+2*nt}, v{ACC+4*nt}, v{ACC+4*nt+1}
        v_cvt_pk_bf16_f32 v{BF+2*nt+1}, v{ACC+4*nt+2}, v{ACC+4*nt+3}
        buffer_store_dwordx2 {v(BF+2*nt,2)}, v{t2}, s[48:51], s13 offen""")
        if nt < 3: k("s_add_u32 s13, s13, 0x10000")
    done = k.label("adone")
    k(f"s_cmp_lg_u32 s{S_J}, 0\ns_cbranch_scc1 {done}")
    su, sq, su2, sq2 = 96, 97, 98, 99
    k(f"""s_mov_b32 s14, 0x3f803f80
    v_mov_b32 v{su}, 0
    v_mov_b32 v{sq}, 0
    v_mov_b32 v{su2}, 0
    v_mov_b32 v{sq2}, 0""")
    for i in range(0, 56, 2):
        k(f"""v_dot2_f32_bf16 v{su}, v{XF+i}, s14, v{su}
        v_dot2_f32_bf16 v{sq}, v{XF+i}, v{XF+i}, v{sq}
        v_dot2_f32_bf16 v{su2}, v{XF+i+1}, s14, v{su2}
        v_dot2_f32_bf16 v{sq2}, v{XF+i+1}, v{XF+i+1}, v{sq2}""")
    k(f"""v_add_f32 v{su}, v{su}, v{su2}
    v_add_f32 v{sq}, v{sq}, v{sq2}""")
    for op in ("v_permlane16_swap_b32", "v_permlane32_swap_b32"):
        k(f"""v_mov_b32 v{su2}, v{su}
        v_mov_b32 v{sq2}, v{sq}
        {op} v{su}, v{su2}
        {op} v{sq}, v{sq2}
        v_add_f32 v{su}, v{su}, v{su2}
        v_add_f32 v{sq}, v{sq}, v{sq2}""")
    k(f"""v_mul_f32 v{su}, v{su}, v{su}
    v_fmac_f32 v{sq}, {fhex(-1/448)}, v{su}
    v_max_f32 v{sq}, 0, v{sq}
    v_mov_b32 v{su}, 0
    v_lshlrev_b32 v{t2}, 2, v{lane}
    s_lshl_b32 s13, s12, 2
    s_add_u32 s14, s13, {SSQ2}
    s_add_u32 s13, s13, {SSQ0}
    s_mov_b64 exec, 0xffff
    buffer_store_dword v{sq}, v{t2}, s[48:51], s13 offen
    buffer_store_dword v{su}, v{t2}, s[48:51], s14 offen
    {done}:
    s_endpgm""")

def pre_common(k, S_JB, S_W, S_Q, S_L, lane, l16, va, t0, t1, t2):
    table_ptr(k, 10, "tab_qj")
    srd(k, 52, 10, 28 * 14336)
    k(f"""v_lshlrev_b32 v{l16}, 4, v{lane}
    s_lshl_b32 s{S_Q}, s{S_JB}, 2
    s_add_u32 s{S_Q}, s{S_Q}, s{S_W}
    s_mul_i32 s{S_Q}, s{S_Q}, 14336
    s_mul_i32 s{S_L}, s{S_W}, {QSTR}""")
    for i in range(14): q_dma_issue(k, i, l16, S_Q, S_L)
    k(f"""v_bfe_u32 v{t0}, v{lane}, 3, 1
    v_mul_u32_u24 v{va}, {QSTR}, v{t0}
    v_and_b32 v{t0}, 0x30, v{lane}
    v_bfe_u32 v{t1}, v{lane}, 2, 1
    v_lshl_add_u32 v{t0}, v{t1}, 3, v{t0}
    v_and_b32 v{t1}, 3, v{lane}
    v_add_u32 v{t0}, v{t0}, v{t1}
    v_lshl_add_u32 v{va}, v{t0}, 4, v{va}""")

def lda_perm(k, va, ks, base):
    for K in range(2):
        for mt in range(2):
            k(f"ds_read_b128 {v(base+8*K+4*mt,4)}, v{va} offset:{2*K*QSTR+ks*1024+64*mt}")

def job_b(k):
    S_ID, S_JB, S_PB, S_W, S_Q, S_L, S_PT = 4, 5, 6, 7, 8, 9, 12
    lane, l16, va, t0, t1, t2, vb, vp = 1, 2, 3, 4, 5, 6, 7, 8
    lre, lim, ldt, lr, li, cr, ci, msk = 9, 10, 11, 12, 13, 14, 15, 16
    BR, BI = 20, 76
    ACC = 132
    AF = 164
    k(f"s_sub_u32 s{S_ID}, s2, {N_A}")
    div7(k, S_JB, S_PB, S_ID)
    wave_lane(k, S_W, lane, t0)
    pre_common(k, S_JB, S_W, S_Q, S_L, lane, l16, va, t0, t1, t2)
    k(f"""s_lshl_b32 s{S_PT}, s{S_PB}, 2
    s_add_u32 s{S_PT}, s{S_PT}, s{S_W}
    s_lshl_b32 s13, s{S_PT}, 4
    v_and_b32 v{t0}, 15, v{lane}
    v_add_u32 v{vp}, s13, v{t0}            ; p
    v_lshrrev_b32 v{t1}, 4, v{lane}
    v_mul_u32_u24 v{vb}, 896, v{vp}
    v_lshl_add_u32 v{vb}, v{t1}, 4, v{vb}
    v_lshlrev_b32 v{vp}, 1, v{vp}
    s_waitcnt lgkmcnt(0)""")
    srd(k, 56, 28, 448 * 896); srd(k, 60, 30, 448 * 896); srd(k, 48, 44, WS_BYTES)
    k(f"""global_load_ushort v{lre}, v{vp}, s[24:25]
    global_load_ushort v{lim}, v{vp}, s[26:27]
    global_load_ushort v{ldt}, v{vp}, s[36:37]""")
    for i in range(14):
        k(f"buffer_load_dwordx4 {v(BR+4*i,4)}, v{vb}, s[56:59], 0 offen offset:{64*i}")
        k(f"buffer_load_dwordx4 {v(BI+4*i,4)}, v{vb}, s[60:63], 0 offen offset:{64*i}")
    k("s_waitcnt vmcnt(28)")
    emit_lam(k, lre, lim, ldt, lr, li, t0, t1)
    k(f"""v_add_f32 v{lr}, -1.0, v{lr}
    v_mul_f32 v{t0}, v{lre}, v{lre}
    v_fmac_f32 v{t0}, v{lim}, v{lim}
    v_rcp_f32 v{t0}, v{t0}
    v_mul_f32 v{cr}, v{lr}, v{lre}
    v_add_f32 v{t0}, v{t0}, v{t0}
    v_fmac_f32 v{cr}, v{li}, v{lim}
    v_mul_f32 v{ci}, v{li}, v{lre}
    v_fma_f32 v{ci}, -v{lr}, v{lim}, v{ci}
    v_mul_f32 v{cr}, v{cr}, v{t0}
    v_mul_f32 v{ci}, v{ci}, v{t0}
    v_mov_b32 v{msk}, 1.0
    v_cmp_gt_u32 vcc, 16, v{lane}
    s_cmp_eq_u32 s{S_JB}, 0
    s_cselect_b64 vcc, vcc, 0
    v_cndmask_b32 v{msk}, v{msk}, 0, vcc""")
    k("s_waitcnt vmcnt(0)\ns_barrier")
    lda_perm(k, va, 0, AF)
    for ks in range(14):
        if ks + 1 < 14:
            lda_perm(k, va, ks + 1, AF + 16 * ((ks + 1) & 1)); k("s_waitcnt lgkmcnt(4)")
        else: k("s_waitcnt lgkmcnt(0)")
        for tl in range(4):
            for part in range(2):
                d = ACC + 8 * tl + 4 * part
                c = "0" if ks == 0 else v(d, 4)
                k(f"v_mfma_f32_16x16x32_bf16 {v(d,4)}, {v(AF+16*(ks&1)+4*tl,4)}, {v((BR,BI)[part]+4*ks,4)}, {c}")
    k(f"""s_mul_i32 s13, s{S_PT}, 28
    s_lshl_b32 s14, s{S_JB}, 1
    s_add_u32 s13, s13, s14
    s_lshl_b32 s13, s13, 10
    s_add_u32 s13, s13, {WBB}
    s_add_u32 s14, s13, {14*1024}""")
    O = 20
    k(f"v_mul_f32 v{ACC}, v{ACC}, v{msk}\nv_mul_f32 v{ACC+4}, v{ACC+4}, v{msk}")
    for K in range(2):
        for mt in range(2):
            d = ACC + 8 * (2 * K + mt)
            for i in range(4):
                k(f"""v_mul_f32 v{O+i}, v{d+i}, v{cr}
                v_fma_f32 v{O+i}, -v{d+4+i}, v{ci}, v{O+i}
                v_mul_f32 v{O+4+i}, v{d+i}, v{ci}
                v_fmac_f32 v{O+4+i}, v{d+4+i}, v{cr}""")
            P = 32 + 8 * K
            k(f"""v_cvt_pk_bf16_f32 v{P+2*mt}, v{O}, v{O+1}
            v_cvt_pk_bf16_f32 v{P+2*mt+1}, v{O+2}, v{O+3}
            v_cvt_pk_bf16_f32 v{P+4+2*mt}, v{O+4}, v{O+5}
            v_cvt_pk_bf16_f32 v{P+4+2*mt+1}, v{O+6}, v{O+7}""")
        k(f"""buffer_store_dwordx4 {v(32+8*K,4)}, v{l16}, s[48:51], s13 offen offset:{1024*K}
        buffer_store_dwordx4 {v(36+8*K,4)}, v{l16}, s[48:51], s14 offen offset:{1024*K}""")
    k("s_endpgm")

def job_d(k):
    S_ID, S_JB, S_OB, S_W, S_Q, S_L, S_JT = 4, 5, 6, 7, 8, 9, 12
    lane, l16, va, t0, t1, t2, vd, msk = 1, 2, 3, 4, 5, 6, 7, 8
    QF, DF = 20, 76
    ACC = 132
    AF = 164
    T = 200
    k(f"s_sub_u32 s{S_ID}, s2, {N_A+N_B}")
    div7(k, S_JB, S_OB, S_ID)
    wave_lane(k, S_W, lane, t0)
    pre_common(k, S_JB, S_W, S_Q, S_L, lane, l16, va, t0, t1, t2)
    k(f"""s_lshl_b32 s{S_JT}, s{S_OB}, 2
    s_add_u32 s{S_JT}, s{S_JT}, s{S_W}
    s_mul_i32 s13, s{S_JT}, 14336
    v_and_b32 v{vd}, 0x30, v{lane}       ; 16*g bytes
    s_waitcnt lgkmcnt(0)""")
    srd(k, 56, 38, 896); srd(k, 48, 44, WS_BYTES)
    for i in range(14):
        if i and i % 4 == 0: k("s_add_u32 s13, s13, 4096")
        k(f"buffer_load_dwordx4 {v(QF+4*i,4)}, v{l16}, s[52:55], s13 offen offset:{1024*(i%4)}")
        k(f"buffer_load_dwordx4 {v(DF+4*i,4)}, v{vd}, s[56:59], 0 offen offset:{64*i}")
    k(f"""v_mov_b32 v{msk}, 1.0
    v_cmp_gt_u32 vcc, 16, v{lane}
    s_cmp_eq_u32 s{S_JB}, 0
    s_cselect_b64 vcc, vcc, 0
    v_cndmask_b32 v{msk}, v{msk}, 0, vcc""")
    for i in range(14):
        k(f"s_waitcnt vmcnt({2*(13-i)})")
        for r in range(4):
            q, d = QF + 4 * i + r, DF + 4 * i + r
            k(f"""v_lshlrev_b32 v{T}, 16, v{q}
            v_lshlrev_b32 v{T+1}, 16, v{d}
            v_and_b32 v{q}, 0xffff0000, v{q}
            v_and_b32 v{d}, 0xffff0000, v{d}
            v_mul_f32 v{T}, v{T}, v{T+1}
            v_mul_f32 v{q}, v{q}, v{d}
            v_cvt_pk_bf16_f32 v{q}, v{T}, v{q}""")
    k("s_barrier")
    lda_perm(k, va, 0, AF)
    for ks in range(14):
        if ks + 1 < 14:
            lda_perm(k, va, ks + 1, AF + 16 * ((ks + 1) & 1)); k("s_waitcnt lgkmcnt(4)")
        else: k("s_waitcnt lgkmcnt(0)")
        for tl in range(4):
            d = ACC + 4 * tl
            c = "0" if ks == 0 else v(d, 4)
            k(f"v_mfma_f32_16x16x32_bf16 {v(d,4)}, {v(AF+16*(ks&1)+4*tl,4)}, {v(QF+4*ks,4)}, {c}")
    k(f"""s_mul_i32 s13, s{S_JT}, 14
    s_lshl_b32 s14, s{S_JB}, 1
    s_add_u32 s13, s13, s14
    s_lshl_b32 s13, s13, 10
    s_add_u32 s13, s13, {WBD}
    v_mul_f32 v{ACC}, v{ACC}, v{msk}""")
    for K in range(2):
        for mt in range(2):
            d = ACC + 4 * (2 * K + mt)
            k(f"""v_cvt_pk_bf16_f32 v{20+4*K+2*mt}, v{d}, v{d+1}
            v_cvt_pk_bf16_f32 v{20+4*K+2*mt+1}, v{d+2}, v{d+3}""")
        k(f"buffer_store_dwordx4 {v(20+4*K,4)}, v{l16}, s[48:51], s13 offen offset:{1024*K}")
    k("s_endpgm")

def job_c(k):
    S_ID, S_PART, S_PB, S_OB, S_W, S_JT, S_G = 4, 5, 6, 8, 7, 12, 9
    lane, l16, va, va2, t0, t1, t2, vg = 1, 2, 3, 9, 4, 5, 6, 7
    QF = 20
    ACC = 132
    AF = 164
    k(f"""s_sub_u32 s{S_ID}, s2, {N_A+N_B+N_D}
    s_cmp_ge_u32 s{S_ID}, 49
    s_cselect_b32 s{S_PART}, 1, 0
    s_mul_i32 s13, s{S_PART}, 49
    s_sub_u32 s{S_ID}, s{S_ID}, s13""")
    div7(k, S_PB, S_OB, S_ID)
    wave_lane(k, S_W, lane, t0)
    table_ptr(k, 10, "tab_qj")
    srd(k, 52, 10, 28 * 14336)
    k(f"""v_lshlrev_b32 v{l16}, 4, v{lane}
    v_lshrrev_b32 v{t0}, 3, v{lane}
    v_mul_u32_u24 v{vg}, 896, v{t0}
    v_bfe_u32 v{t0}, v{lane}, 4, 1
    v_lshlrev_b32 v{t0}, 2, v{t0}
    v_and_b32 v{t1}, 7, v{lane}
    v_xor_b32 v{t0}, v{t0}, v{t1}
    v_lshl_add_u32 v{vg}, v{t0}, 4, v{vg}
    s_lshl_b32 s{S_JT}, s{S_OB}, 2
    s_add_u32 s{S_JT}, s{S_JT}, s{S_W}
    s_mul_i32 s13, s{S_JT}, 14336
    s_lshl_b32 s{S_G}, s{S_PB}, 7
    s_mul_i32 s14, s{S_W}, {8*896}
    s_add_u32 s{S_G}, s{S_G}, s14
    s_lshl_b32 s14, s{S_W}, 10
    s_mov_b32 m0, s14
    s_waitcnt lgkmcnt(0)
    s_cmp_eq_u32 s{S_PART}, 0
    s_cselect_b32 s14, s32, s34
    s_cselect_b32 s15, s33, s35""")
    srd(k, 56, 14, 448 * 896); srd(k, 48, 44, WS_BYTES)
    for i in range(14):
        if i: k(f"s_add_u32 s{S_G}, s{S_G}, {32*896}\ns_add_u32 m0, m0, 4096")
        k(f"buffer_load_dwordx4 v{vg}, s[56:59], s{S_G} offen lds")
        if i and i % 4 == 0: k("s_add_u32 s13, s13, 4096")
        k(f"buffer_load_dwordx4 {v(QF+4*i,4)}, v{l16}, s[52:55], s13 offen offset:{1024*(i%4)}")
    k(f"""v_lshrrev_b32 v{t0}, 4, v{lane}
    v_bfe_u32 v{t1}, v{lane}, 2, 2
    v_lshl_add_u32 v{t0}, v{t0}, 3, v{t1}
    v_lshlrev_b32 v{va}, 7, v{t0}
    v_and_b32 v{t0}, 3, v{lane}
    v_lshl_add_u32 v{va}, v{t0}, 4, v{va}
    v_bfe_u32 v{t0}, v{lane}, 3, 1
    v_lshl_add_u32 v{va}, v{t0}, 6, v{va}      ; K=0 address
    v_xor_b32 v{va2}, 64, v{va}                ; K=1 address""")
    def lda(ks, base):
        for K in range(2):
            for mt in range(2):
                for u in range(2):
                    k(f"ds_read_b64_tr_b16 {v(base+8*K+4*mt+2*u,2)}, v{(va,va2)[K]} offset:{ks*4096+u*512+8*mt}")
    k("s_waitcnt vmcnt(0)\ns_barrier")
    lda(0, AF)
    for ks in range(14):
        if ks + 1 < 14:
            lda(ks + 1, AF + 16 * ((ks + 1) & 1)); k("s_waitcnt lgkmcnt(8)")
        else: k("s_waitcnt lgkmcnt(0)")
        for tl in range(4):
            d = ACC + 4 * tl
            c = "0" if ks == 0 else v(d, 4)
            k(f"v_mfma_f32_16x16x32_bf16 {v(d,4)}, {v(AF+16*(ks&1)+4*tl,4)}, {v(QF+4*ks,4)}, {c}")
    k(f"""s_lshl_b32 s13, s{S_OB}, 1
    s_lshr_b32 s14, s{S_W}, 1
    s_add_u32 s13, s13, s14
    s_mul_i32 s13, s13, 56
    s_mul_i32 s14, s{S_PART}, 28
    s_add_u32 s13, s13, s14
    s_lshl_b32 s14, s{S_PB}, 2
    s_add_u32 s13, s13, s14
    s_lshl_b32 s13, s13, 10
    s_and_b32 s14, s{S_W}, 1
    s_lshl_b32 s14, s14, 8
    s_add_u32 s13, s13, s14
    s_add_u32 s13, s13, {WC}
    v_and_b32 v{t0}, 15, v{lane}
    v_lshlrev_b32 v{t0}, 4, v{t0}
    v_bfe_u32 v{t1}, v{lane}, 4, 1
    v_lshl_add_u32 v{t0}, v{t1}, 9, v{t0}
    v_lshrrev_b32 v{t1}, 5, v{lane}
    v_lshl_add_u32 v{t0}, v{t1}, 10, v{t0}""")
    for K in range(2):
        for mt in range(2):
            d = ACC + 4 * (2 * K + mt)
            k(f"""v_cvt_pk_bf16_f32 v{20+4*K+2*mt}, v{d}, v{d+1}
            v_cvt_pk_bf16_f32 v{20+4*K+2*mt+1}, v{d+2}, v{d+3}""")
        k(f"buffer_store_dwordx4 {v(20+4*K,4)}, v{t0}, s[48:51], s13 offen offset:{2048*K}")
    k("s_endpgm")

def job_w(k):
    S_R, S_W, S_G = 4, 7, 9
    lane, l16, t0, t1, va, vo = 1, 2, 4, 5, 3, 6
    O = 20
    IMOFF = 15360
    k(f"s_sub_u32 s{S_R}, s2, {N_A+N_B+N_D+N_C}")
    wave_lane(k, S_W, lane, t0)
    k(f"""v_lshlrev_b32 v{l16}, 4, v{lane}
    s_mul_i32 s{S_G}, s{S_R}, 14400
    s_and_b32 s13, s{S_W}, 1
    s_lshl_b32 s13, s13, 13           ; (w&1)*8192
    s_add_u32 s{S_G}, s{S_G}, s13
    s_lshr_b32 s14, s{S_W}, 1
    s_mul_i32 s15, s14, {IMOFF}
    s_add_u32 s13, s13, s15
    s_mov_b32 m0, s13
    s_waitcnt lgkmcnt(0)
    s_cmp_eq_u32 s14, 0
    s_cselect_b32 s14, s18, s20
    s_cselect_b32 s15, s19, s21""")
    srd(k, 56, 14, 2048 * 450); srd(k, 48, 44, WS_BYTES)
    for i in range(7):
        if i == 4: k(f"s_add_u32 s{S_G}, s{S_G}, 4096\ns_add_u32 m0, m0, 4096")
        k(f"buffer_load_dwordx4 v{l16}, s[56:59], s{S_G} offen offset:{1024*(i%4)} lds")
    sk = k.label("w7")
    k(f"""s_bitcmp1_b32 s{S_W}, 0
    s_cbranch_scc1 {sk}
    buffer_load_dwordx4 v{l16}, s[56:59], s{S_G} offen offset:3072 lds
    {sk}:""")
    k(f"""v_and_b32 v{t0}, 7, v{lane}
    v_mul_u32_u24 v{va}, 1800, v{t0}
    v_lshrrev_b32 v{t1}, 3, v{lane}
    s_mul_i32 s13, s{S_W}, 56
    v_add_u32 v{t1}, s13, v{t1}          ; u for i=0
    v_lshlrev_b32 v{vo}, 13, v{t1}
    v_lshl_add_u32 v{vo}, v{t0}, 4, v{vo}
    v_lshl_add_u32 v{va}, v{t1}, 1, v{va}
    v_mov_b32 v{t0}, v{va}
    v_cmp_eq_u32 vcc, 0, v{t1}
    v_add_u32 v{t1}, 448, v{va}
    v_cndmask_b32 v{t0}, v{t0}, v{t1}, vcc
    s_lshl_b32 s13, s{S_R}, 7
    s_add_u32 s13, s13, {WT}
    s_waitcnt vmcnt(0)
    s_barrier""")
    H = 60
    def fin(i):
        for e in range(4):
            k(f"v_lshl_or_b32 v{O+4*i+e}, v{H+4*i+e}, 16, v{O+4*i+e}")
        k(f"buffer_store_dwordx4 {v(O+4*i,4)}, v{vo}, s[48:51], s13 offen")
        if i < 6: k("s_add_u32 s13, s13, 0x10000")
    for i in range(7):
        ad = t0 if i == 0 else va
        for e in range(4):
            k(f"""ds_read_u16 v{O+4*i+e}, v{ad} offset:{e*450+16*i}
            ds_read_u16 v{H+4*i+e}, v{ad} offset:{IMOFF+e*450+16*i}""")
        if i >= 1:
            k(f"s_waitcnt lgkmcnt(8)"); fin(i - 1)
    k(f"s_waitcnt lgkmcnt(0)"); fin(6)
    k("s_endpgm")

def build_k1():
    k = Kernel("k1")
    prologue_ptrs(k)
    lb, ld, lc, lw, lx = (k.label(x) for x in "bdcwx")
    k(f"""s_cmp_ge_u32 s2, {N_A}
    s_cbranch_scc1 {lb}""")
    job_a(k)
    k(f"{lb}:\ns_cmp_ge_u32 s2, {N_A+N_B}\ns_cbranch_scc1 {ld}")
    job_b(k)
    k(f"{ld}:\ns_cmp_ge_u32 s2, {N_A+N_B+N_D}\ns_cbranch_scc1 {lc}")
    job_d(k)
    k(f"{lc}:\ns_cmp_ge_u32 s2, {N_A+N_B+N_D+N_C}\ns_cbranch_scc1 {lw}")
    job_c(k)
    k(f"{lw}:\ns_cmp_ge_u32 s2, {K1_GRID}\ns_cbranch_scc1 {lx}")
    job_w(k)
    k(f"{lx}:\ns_endpgm")
    return k, dict(grid=K1_GRID, lds=K1_LDS, nv=208, na=0, ns=72)
```

```python
from common import *
from k1 import wave_lane

K2_LDS = 8192 + 2 * 32 * 144
N_R = 28

def fft_table():
    lane = np.arange(64); n = lane & 15; g = lane >> 4
    def pack8(vals):
        b = np.array([[bf16bits(x) for x in row] for row in vals], np.uint32)
        return b[:, 0::2] | (b[:, 1::2] << 16)
    blocks = []
    for w in range(4):
        for ks in range(2):
            a_ = (16*w + n)[:, None]; b_ = (32*ks + 8*g)[:, None] + np.arange(8)[None, :]
            ang = 2*np.pi*((a_*b_) % 64)/64
            blocks.append(pack8(np.cos(ang))); blocks.append(pack8(np.sin(ang)))
        k1 = (16*w + n)[:, None]; n2 = (8*g)[:, None] + np.arange(8)[None, :]
        ang = 2*np.pi*(k1*n2)/2048
        t = np.concatenate([np.cos(ang), -np.sin(ang)], 1).astype(np.float32).view(np.uint32)
        for j in range(4): blocks.append(t[:, 4*j:4*j+4])
        tr = np.zeros((64, 8)); ti = np.zeros((64, 8))
        for nt in range(2):
            for i in range(4):
                n2 = 8*(n >> 2) + 4*nt + (n & 3); k1 = 16*w + 4*g + i
                ang = 2*np.pi*(k1*n2)/2048
                tr[:, 4*nt+i] = np.cos(ang)/2048; ti[:, 4*nt+i] = np.sin(ang)/2048
        t = np.concatenate([tr, ti], 1).astype(np.float32).view(np.uint32)
        for j in range(4): blocks.append(t[:, 4*j:4*j+4])
    for t_ in range(2):
        a_ = (8*(n >> 2) + 4*t_ + (n & 3))[:, None]; b_ = (8*g)[:, None] + np.arange(8)[None, :]
        ang = 2*np.pi*((a_*b_) % 32)/32
        blocks.append(pack8(np.cos(ang))); blocks.append(pack8(np.sin(ang)))
    d = np.concatenate([b.reshape(-1) for b in blocks]).astype(np.uint64)
    q = d[0::2] | (d[1::2] << np.uint64(32))
    L = [".p2align 8", ".type tab_fft,@object", "tab_fft:"]
    for i in range(0, len(q), 8):
        L.append(".quad " + ",".join("0x%x" % int(x) for x in q[i:i+8]))
    return "\n".join(L)

def cmul(k, orr, oi, dr, di, tr, ti):
    k(f"""v_mul_f32 v{orr}, v{dr}, v{tr}
    v_mul_f32 v{oi}, v{dr}, v{ti}
    v_fma_f32 v{orr}, -v{di}, v{ti}, v{orr}
    v_fmac_f32 v{oi}, v{di}, v{tr}""")

def conv_body(k):
    S_W, S_RE, S_IM, S_SM = 7, 8, 9, 12
    lane, l16, t0, t1, vx, vw, vq, vtr = 1, 2, 3, 4, 5, 6, 7, 8
    XR, XI = 12, 16
    SQ = 20
    WW = 28
    C64, S64, N64 = 36, 44, 52
    TF = 60
    TI = 76
    C32, S32, N32 = 92, 100, 108
    FR, FI = 116, 124
    AF = 132
    DR, DI = 164, 172
    T = 180
    PR, PI = 196, 200
    wave_lane(k, S_W, lane, t0)
    table_ptr(k, 10, "tab_fft")
    srd(k, 52, 10, 52 * 1024)
    k(f"""v_lshlrev_b32 v{l16}, 4, v{lane}
    s_mul_i32 s13, s{S_W}, {12*1024}
    s_add_u32 s14, s13, 4096
    s_add_u32 s15, s13, 8192
    s_lshl_b32 s{S_RE}, s2, 1
    s_add_u32 s{S_IM}, s{S_RE}, 1
    s_cmp_eq_u32 s2, 0
    s_cselect_b32 s{S_RE}, 1, s{S_RE}
    s_cselect_b32 s{S_IM}, 0, s{S_IM}
    s_cselect_b32 s{S_SM}, 0, 1.0
    s_lshl_b32 s{S_RE}, s{S_RE}, 12
    s_lshl_b32 s{S_IM}, s{S_IM}, 12
    v_and_b32 v{t0}, 15, v{lane}
    v_lshrrev_b32 v{t1}, 4, v{lane}
    s_lshl_b32 s18, s{S_W}, 4
    v_add_u32 v{t0}, s18, v{t0}            ; n1 = 16w+n
    v_lshlrev_b32 v{vx}, 6, v{t0}
    v_lshl_add_u32 v{vx}, v{t1}, 4, v{vx}
    v_lshlrev_b32 v{vq}, 1, v{vx}
    v_lshlrev_b32 v{vw}, 2, v{t0}
    v_lshl_add_u32 v{vw}, v{t1}, 11, v{vw}
    s_lshl_b32 s18, s2, 13
    s_add_u32 s18, s18, {WT}
    s_add_u32 s16, s4, s{S_RE}
    s_add_u32 s17, s4, s{S_IM}
    s_waitcnt lgkmcnt(0)""")
    srd(k, 48, 44, WS_BYTES)
    k(f"""buffer_load_dwordx4 {v(XR,4)}, v{vx}, s[48:51], s16 offen
    buffer_load_dwordx4 {v(XI,4)}, v{vx}, s[48:51], s17 offen
    buffer_load_dwordx4 {v(SQ,4)}, v{vq}, s[48:51], s5 offen
    buffer_load_dwordx4 {v(SQ+4,4)}, v{vq}, s[48:51], s5 offen offset:16""")
    for ks in range(2):
        k(f"buffer_load_dwordx4 {v(C64+4*ks,4)}, v{l16}, s[52:55], s13 offen offset:{2048*ks}")
        k(f"buffer_load_dwordx4 {v(S64+4*ks,4)}, v{l16}, s[52:55], s13 offen offset:{2048*ks+1024}")
    for j in range(4): k(f"buffer_load_dwordx4 {v(TF+4*j,4)}, v{l16}, s[52:55], s14 offen offset:{1024*j}")
    k("s_mov_b32 s13, 0xc000")
    for t_ in range(2):
        k(f"buffer_load_dwordx4 {v(C32+4*t_,4)}, v{l16}, s[52:55], s13 offen offset:{2048*t_}")
        k(f"buffer_load_dwordx4 {v(S32+4*t_,4)}, v{l16}, s[52:55], s13 offen offset:{2048*t_+1024}")
    for e in range(8): k(f"buffer_load_dword v{WW+e}, v{vw}, s[48:51], s18 offen offset:{256*e}")
    for j in range(4): k(f"buffer_load_dwordx4 {v(TI+4*j,4)}, v{l16}, s[52:55], s15 offen offset:{1024*j}")
    k(f"""v_lshrrev_b32 v{t0}, 4, v{lane}
    v_bfe_u32 v{t1}, v{lane}, 2, 2
    v_lshl_add_u32 v{t0}, v{t0}, 3, v{t1}
    v_lshlrev_b32 v{vtr}, 6, v{t0}
    v_and_b32 v{t0}, 3, v{lane}
    v_lshl_add_u32 v{vtr}, v{t0}, 4, v{vtr}
    v_mov_b32 v{t1}, {fhex(1e-5)}
    s_mov_b32 s19, {fhex(1/448)}
    s_waitcnt vmcnt(24)""")
    for e in range(8):
        k(f"v_fma_f32 v{SQ+e}, v{SQ+e}, s19, v{t1}")
    for e in range(8):
        k(f"v_rsq_f32 v{SQ+e}, v{SQ+e}")
    for j in range(4):
        k(f"""v_lshlrev_b32 v{FR+2*j}, 16, v{XR+j}
        v_and_b32 v{FR+2*j+1}, 0xffff0000, v{XR+j}
        v_lshlrev_b32 v{FI+2*j}, 16, v{XI+j}
        v_and_b32 v{FI+2*j+1}, 0xffff0000, v{XI+j}""")
    for e in range(8):
        k(f"""v_mul_f32 v{T+e}, v{FR+e}, v{SQ+e}
        v_mul_f32 v{SQ+e}, s{S_SM}, v{SQ+e}""")
    for j in range(4): k(f"v_cvt_pk_bf16_f32 v{PR+j}, v{T+2*j}, v{T+2*j+1}")
    k(f"ds_write_b128 v{vx}, {v(PR,4)}")
    for e in range(8): k(f"v_mul_f32 v{T+8+e}, v{FI+e}, v{SQ+e}")
    for j in range(4): k(f"v_cvt_pk_bf16_f32 v{PI+j}, v{T+8+2*j}, v{T+8+2*j+1}")
    k(f"ds_write_b128 v{vx}, {v(PI,4)} offset:4096")
    k("s_waitcnt vmcnt(20)")
    for j in range(8): k(f"v_xor_b32 v{N64+j}, 0x80008000, v{S64+j}")
    k("s_waitcnt lgkmcnt(0)\ns_barrier")
    for ks in range(2):
        for mt in range(2):
            for pl in range(2):
                for u in range(2):
                    k(f"ds_read_b64_tr_b16 {v(AF+16*pl+8*mt+4*ks+2*u,2)}, v{vtr} offset:{4096*pl+2048*ks+256*u+8*mt}")
    def A(pl, mt, ks): return v(AF+16*pl+8*mt+4*ks, 4)
    mf = "v_mfma_f32_16x16x32_bf16"
    for ks in range(2):
        k(f"s_waitcnt lgkmcnt({8*(1-ks)})")
        for mt in range(2):
            k(f"{mf} {v(DR+4*mt,4)}, {A(0,mt,ks)}, {v(C64+4*ks,4)}, {'0' if ks==0 else v(DR+4*mt,4)}")
            k(f"{mf} {v(DI+4*mt,4)}, {A(1,mt,ks)}, {v(C64+4*ks,4)}, {'0' if ks==0 else v(DI+4*mt,4)}")
        for mt in range(2):
            k(f"{mf} {v(DR+4*mt,4)}, {A(1,mt,ks)}, {v(S64+4*ks,4)}, {v(DR+4*mt,4)}")
            k(f"{mf} {v(DI+4*mt,4)}, {A(0,mt,ks)}, {v(N64+4*ks,4)}, {v(DI+4*mt,4)}")
    k("s_waitcnt vmcnt(12)")
    for j in range(8): k(f"v_xor_b32 v{N32+j}, 0x80008000, v{S32+j}")
    for e in range(8): cmul(k, T+e, T+8+e, DR+e, DI+e, TF+e, TF+8+e)
    for j in range(4):
        k(f"v_cvt_pk_bf16_f32 v{PR+j}, v{T+2*j}, v{T+2*j+1}\nv_cvt_pk_bf16_f32 v{PI+j}, v{T+8+2*j}, v{T+8+2*j+1}")
    for mt in range(2):
        k(f"{mf} {v(DR+4*mt,4)}, {v(C32+4*mt,4)}, {v(PR,4)}, 0")
        k(f"{mf} {v(DI+4*mt,4)}, {v(C32+4*mt,4)}, {v(PI,4)}, 0")
    for mt in range(2):
        k(f"{mf} {v(DR+4*mt,4)}, {v(S32+4*mt,4)}, {v(PI,4)}, {v(DR+4*mt,4)}")
        k(f"{mf} {v(DI+4*mt,4)}, {v(N32+4*mt,4)}, {v(PR,4)}, {v(DI+4*mt,4)}")
    k("s_waitcnt vmcnt(4)")
    for e in range(8):
        k(f"v_lshlrev_b32 v{TF+e}, 16, v{WW+e}\nv_and_b32 v{TF+8+e}, 0xffff0000, v{WW+e}")
    for e in range(8): cmul(k, T+e, T+8+e, DR+e, DI+e, TF+e, TF+8+e)
    for j in range(4):
        k(f"v_cvt_pk_bf16_f32 v{PR+j}, v{T+2*j}, v{T+2*j+1}\nv_cvt_pk_bf16_f32 v{PI+j}, v{T+8+2*j}, v{T+8+2*j+1}")
    for nt in range(2):
        k(f"{mf} {v(DR+4*nt,4)}, {v(PR,4)}, {v(C32+4*nt,4)}, 0")
        k(f"{mf} {v(DI+4*nt,4)}, {v(PI,4)}, {v(C32+4*nt,4)}, 0")
    for nt in range(2):
        k(f"{mf} {v(DR+4*nt,4)}, {v(PI,4)}, {v(N32+4*nt,4)}, {v(DR+4*nt,4)}")
        k(f"{mf} {v(DI+4*nt,4)}, {v(PR,4)}, {v(S32+4*nt,4)}, {v(DI+4*nt,4)}")
    vw2, vr2 = vw, vq
    k(f"""v_bfe_u32 v{t0}, v{lane}, 2, 2
    v_and_b32 v{t1}, 3, v{lane}
    v_lshl_add_u32 v{t0}, v{t0}, 3, v{t1}
    v_mul_u32_u24 v{t0}, 144, v{t0}
    v_lshrrev_b32 v{t1}, 4, v{lane}
    v_lshl_add_u32 v{vr2}, v{t1}, 4, v{t0}
    v_lshl_add_u32 v{vw2}, v{t1}, 3, v{t0}
    s_lshl_b32 s13, s{S_W}, 5
    v_add_u32 v{vw2}, s13, v{vw2}
    s_waitcnt vmcnt(0)""")
    IM2 = 32 * 144
    for e in range(8): cmul(k, T+e, T+8+e, DR+e, DI+e, TI+e, TI+8+e)
    for j in range(4):
        k(f"v_cvt_pk_bf16_f32 v{PR+j}, v{T+2*j}, v{T+2*j+1}\nv_cvt_pk_bf16_f32 v{PI+j}, v{T+8+2*j}, v{T+8+2*j+1}")
    for nt in range(2):
        k(f"ds_write_b64 v{vw2}, {v(PR+2*nt,2)} offset:{8192+nt*4*144}")
        k(f"ds_write_b64 v{vw2}, {v(PI+2*nt,2)} offset:{8192+IM2+nt*4*144}")
    k("s_waitcnt lgkmcnt(0)\ns_barrier")
    for ks in range(2):
        for mt in range(2):
            for pl in range(2):
                k(f"ds_read_b128 {A(pl,mt,ks)}, v{vr2} offset:{8192+IM2*pl+mt*4*144+64*ks}")
    for ks in range(2):
        k(f"s_waitcnt lgkmcnt({4*(1-ks)})")
        for mt in range(2):
            k(f"{mf} {v(DR+4*mt,4)}, {A(0,mt,ks)}, {v(C64+4*ks,4)}, {'0' if ks==0 else v(DR+4*mt,4)}")
            k(f"{mf} {v(DI+4*mt,4)}, {A(1,mt,ks)}, {v(C64+4*ks,4)}, {'0' if ks==0 else v(DI+4*mt,4)}")
        for mt in range(2):
            k(f"{mf} {v(DR+4*mt,4)}, {A(1,mt,ks)}, {v(N64+4*ks,4)}, {v(DR+4*mt,4)}")
            k(f"{mf} {v(DI+4*mt,4)}, {A(0,mt,ks)}, {v(S64+4*ks,4)}, {v(DI+4*mt,4)}")
    k(f"s_add_u32 s16, s6, s{S_RE}\ns_add_u32 s17, s6, s{S_IM}")
    for e in range(8): k(f"v_add_f32 v{FR+e}, v{FR+e}, v{DR+e}")
    for j in range(4): k(f"v_cvt_pk_bf16_f32 v{PR+j}, v{FR+2*j}, v{FR+2*j+1}")
    k(f"buffer_store_dwordx4 {v(PR,4)}, v{vx}, s[48:51], s16 offen")
    for e in range(8): k(f"v_fmac_f32 v{FI+e}, s{S_SM}, v{DI+e}")
    for j in range(4): k(f"v_cvt_pk_bf16_f32 v{PI+j}, v{FI+2*j}, v{FI+2*j+1}")
    k(f"buffer_store_dwordx4 {v(PI,4)}, v{vx}, s[48:51], s17 offen")
    k("s_endpgm")

def repack_job(k):
    lane, l16, t0, t1, vc = 1, 2, 3, 4, 5
    k(f"""s_load_dwordx4 s[32:35], s[0:1], 64
    s_sub_u32 s4, s2, 224""")
    wave_lane(k, 7, lane, t0)
    k(f"""v_lshlrev_b32 v{l16}, 4, v{lane}
    s_lshr_b32 s5, s4, 1           ; js*2+nh
    s_and_b32 s6, s4, 1            ; part
    s_lshl_b32 s8, s5, 5
    v_and_b32 v{t0}, 31, v{lane}
    v_add_u32 v{t0}, s8, v{t0}
    v_mul_u32_u24 v{vc}, 896, v{t0}
    v_lshrrev_b32 v{t1}, 5, v{lane}
    v_lshl_add_u32 v{vc}, v{t1}, 4, v{vc}
    s_mul_i32 s8, s7, {7*32}
    s_mul_i32 s9, s4, 28
    s_mul_i32 s12, s7, 7
    s_add_u32 s9, s9, s12
    s_lshl_b32 s9, s9, 10
    s_add_u32 s9, s9, {WC7}
    s_waitcnt lgkmcnt(0)
    s_cmp_eq_u32 s6, 0
    s_cselect_b32 s14, s32, s34
    s_cselect_b32 s15, s33, s35""")
    srd(k, 56, 14, 448 * 896); srd(k, 48, 44, WS_BYTES)
    for i in range(7): k(f"buffer_load_dwordx4 {v(8+4*i,4)}, v{vc}, s[56:59], s8 offen offset:{32*i}")
    for i in range(7):
        if i == 4: k("s_add_u32 s9, s9, 4096")
        k(f"s_waitcnt vmcnt(6)\nbuffer_store_dwordx4 {v(8+4*i,4)}, v{l16}, s[48:51], s9 offen offset:{1024*(i%4)}")
    k("s_endpgm")

def build_k2():
    k = Kernel("k2")
    lr, lx = k.label("r"), k.label("x")
    k(f"""s_load_dwordx2 s[44:45], s[0:1], 112
    s_cmp_ge_u32 s2, 224
    s_cbranch_scc1 {lr}
    s_mov_b32 s4, {X0T}
    s_mov_b32 s5, {SSQ0}
    s_mov_b32 s6, {X1T}
    L_conv_body:""")
    conv_body(k)
    k(f"{lr}:\ns_cmp_ge_u32 s2, {224+N_R}\ns_cbranch_scc1 {lx}")
    repack_job(k)
    k(f"{lx}:\ns_endpgm")
    k5 = Kernel("k5")
    k5(f"""s_load_dwordx2 s[44:45], s[0:1], 112
    s_cmp_ge_u32 s2, 224
    s_cbranch_scc1 L_k5_x
    s_mov_b32 s4, {X2T}
    s_mov_b32 s5, {SSQ2}
    s_mov_b32 s6, {X3T}
    s_branch L_conv_body
    L_k5_x:
    s_endpgm""")
    info = dict(lds=K2_LDS, nv=204, na=0, ns=64)
    return (k, dict(grid=224 + N_R, **info)), (k5, dict(grid=224, **info))
```

```python
from common import *
from k1 import wave_lane

K3_LDS = 57344 + 256
E_BYTES = 32 * 448 * 16

def cmad(k, orr, oi, ar, ai, xr, xi, br, bi):
    k(f"""v_fma_f32 v{orr}, v{ar}, v{xr}, v{br}
    v_fma_f32 v{oi}, v{ar}, v{xi}, v{bi}
    v_fma_f32 v{orr}, -v{ai}, v{xi}, v{orr}
    v_fmac_f32 v{oi}, v{ai}, v{xr}""")
def csq(k, orr, oi, ar, ai):
    k(f"""v_mul_f32 v{orr}, v{ar}, v{ar}
    v_mul_f32 v{oi}, v{ar}, v{ai}
    v_fma_f32 v{orr}, -v{ai}, v{ai}, v{orr}
    v_add_f32 v{oi}, v{oi}, v{oi}""")
def cmul(k, orr, oi, ar, ai, br, bi):
    k(f"""v_mul_f32 v{orr}, v{ar}, v{br}
    v_mul_f32 v{oi}, v{ar}, v{bi}
    v_fma_f32 v{orr}, -v{ai}, v{bi}, v{orr}
    v_fmac_f32 v{oi}, v{ai}, v{br}""")

def body(k):
    S_C, S_J, S_T, S_W, S_PT, S_G, S_WB, S_WX = 12, 13, 14, 7, 15, 68, 69, 70
    lane, l16, t0, t1, t2, vdma, va0, va1, vag, vp, vn, vq = 1, 2, 3, 4, 5, 6, 7, 8, 9, 10, 11, 12
    lre, lim, ldt, dsk = 13, 14, 15, 16
    lr, li, p16r, p16i, Lr, Li, pqr, pqi, pLr, pLi = 17, 18, 19, 20, 21, 22, 23, 24, 25, 26
    TT = 28
    AR, AI, AX, AG = 44, 60, 76, 92
    AF = 96
    RS = 136
    EO = 152
    mf = "v_mfma_f32_16x16x32_bf16"
    decode_cj(k, 2, S_C, S_J, S_T)
    wave_lane(k, S_W, lane, t0)
    table_ptr(k, 10, "tab_qd")
    k(f"""v_lshlrev_b32 v{l16}, 4, v{lane}
    v_and_b32 v{vn}, 15, v{lane}
    v_lshrrev_b32 v{vq}, 4, v{lane}
    s_lshl_b32 s{S_PT}, s{S_J}, 2
    s_add_u32 s{S_PT}, s{S_PT}, s{S_W}
    s_lshl_b32 s{S_T}, s{S_PT}, 4
    v_add_u32 v{vp}, s{S_T}, v{vn}
    v_lshlrev_b32 v{t2}, 1, v{vp}
    v_lshrrev_b32 v{t0}, 3, v{lane}
    v_lshlrev_b32 v{vdma}, 12, v{t0}
    v_and_b32 v{t0}, 1, v{vq}
    v_and_b32 v{t1}, 7, v{lane}
    v_xor_b32 v{t0}, v{t0}, v{t1}
    v_lshl_add_u32 v{vdma}, v{t0}, 4, v{vdma}
    s_lshl_b32 s{S_G}, s{S_W}, 15
    s_lshl_b32 s{S_T}, s{S_C}, 7
    s_add_u32 s{S_G}, s{S_G}, s{S_T}
    s_add_u32 s{S_G}, s{S_G}, s4
    s_lshl_b32 s{S_T}, s{S_W}, 10
    s_mov_b32 m0, s{S_T}
    s_mul_i32 s{S_WB}, s{S_PT}, {28*1024}
    s_add_u32 s{S_WB}, s{S_WB}, {WBB}
    s_mul_i32 s{S_WX}, s{S_PT}, {14*1024}
    s_waitcnt lgkmcnt(0)
    s_add_u32 s72, s44, {WBD}
    s_addc_u32 s73, s45, 0
    s_cmp_eq_u32 s9, 0
    s_cselect_b32 s10, s72, s10
    s_cselect_b32 s11, s73, s11""")
    srd(k, 48, 44, WS_BYTES)
    srd(k, 56, 10, 28 * 14336)
    k(f"""global_load_ushort v{lre}, v{t2}, s[24:25]
    global_load_ushort v{lim}, v{t2}, s[26:27]
    global_load_ushort v{ldt}, v{t2}, s[36:37]
    global_load_ushort v{dsk}, v{t2}, s[38:39]
    s_add_u32 s71, s{S_WB}, {14*1024}""")
    for ks in range(14):
        if ks:
            k(f"s_add_u32 s{S_G}, s{S_G}, {32*4096}\ns_add_u32 m0, m0, 4096")
            if ks % 4 == 0:
                k(f"s_add_u32 s{S_WB}, s{S_WB}, 4096\ns_add_u32 s71, s71, 4096\ns_add_u32 s{S_WX}, s{S_WX}, 4096")
        o = 1024 * (ks % 4)
        k(f"""buffer_load_dwordx4 v{vdma}, s[48:51], s{S_G} offen lds
        buffer_load_dwordx4 {a(12*ks,4)}, v{l16}, s[48:51], s{S_WB} offen offset:{o}
        buffer_load_dwordx4 {a(12*ks+4,4)}, v{l16}, s[48:51], s71 offen offset:{o}
        buffer_load_dwordx4 {a(12*ks+8,4)}, v{l16}, s[56:59], s{S_WX} offen offset:{o}""")
    k(f"s_add_u32 s72, s44, s6\ns_addc_u32 s73, s45, 0")
    srd(k, 60, 72, E_BYTES)
    k(f"""v_bfe_u32 v{t1}, v{lane}, 2, 2
    v_lshl_add_u32 v{t0}, v{vq}, 3, v{t1}
    v_lshlrev_b32 v{va0}, 7, v{t0}
    v_and_b32 v{t0}, 3, v{lane}
    v_lshlrev_b32 v{t0}, 1, v{t0}
    v_bfe_u32 v{t1}, v{lane}, 3, 1
    v_xor_b32 v{t0}, v{t0}, v{t1}
    v_lshl_add_u32 v{va0}, v{t0}, 4, v{va0}
    v_xor_b32 v{va1}, 16, v{va0}
    s_lshr_b32 s{S_T}, s{S_W}, 1
    s_lshl_b32 s{S_T}, s{S_T}, 4
    v_xor_b32 v{vag}, s{S_T}, v{va0}
    s_and_b32 s{S_T}, s{S_W}, 1
    s_lshl_b32 s{S_T}, s{S_T}, 3
    v_add_u32 v{vag}, s{S_T}, v{vag}""")
    k(f"""s_sub_u32 s{S_T}, s{S_C}, 1
    s_mul_i32 s{S_T}, s{S_T}, 7168
    v_mul_u32_u24 v{t0}, {8*7168}, v{vq}
    v_lshlrev_b32 v{t1}, 4, v{vp}
    v_sub_u32 v{t1}, v{t1}, v{t0}
    v_add_u32 v{EO}, s{S_T}, v{t1}""")
    for r in range(1, 8): k(f"v_subrev_u32 v{EO+r}, 7168, v{EO+r-1}")
    k("s_waitcnt vmcnt(56)")
    emit_lam(k, lre, lim, ldt, lr, li, t0, t1)
    k(f"v_lshlrev_b32 v{dsk}, 16, v{dsk}")
    A0, A1, B0, B1 = TT, TT+1, TT+2, TT+3
    csq(k, A0, A1, lr, li); csq(k, B0, B1, A0, A1); csq(k, A0, A1, B0, B1); csq(k, p16r, p16i, A0, A1)
    csq(k, A0, A1, p16r, p16i)
    cmul(k, B0, B1, A0, A1, p16r, p16i)
    csq(k, Lr, Li, A0, A1)
    def sel4(outr, outi, r1, i1, r2, i2, r3, i3):
        k(f"""v_mov_b32 v{outr}, 1.0
        v_mov_b32 v{outi}, 0
        v_cmp_eq_u32 vcc, 1, v{vq}
        v_cndmask_b32 v{outr}, v{outr}, v{r1}, vcc
        v_cndmask_b32 v{outi}, v{outi}, v{i1}, vcc
        v_cmp_eq_u32 vcc, 2, v{vq}
        v_cndmask_b32 v{outr}, v{outr}, v{r2}, vcc
        v_cndmask_b32 v{outi}, v{outi}, v{i2}, vcc
        v_cmp_eq_u32 vcc, 3, v{vq}
        v_cndmask_b32 v{outr}, v{outr}, v{r3}, vcc
        v_cndmask_b32 v{outi}, v{outi}, v{i3}, vcc""")
    sel4(pqr, pqi, p16r, p16i, A0, A1, B0, B1)
    C0, C1 = TT+4, TT+5
    csq(k, A0, A1, Lr, Li); csq(k, B0, B1, A0, A1); csq(k, A0, A1, B0, B1)
    csq(k, B0, B1, A0, A1)
    cmul(k, C0, C1, A0, A1, B0, B1)
    sel4(pLr, pLi, A0, A1, B0, B1, C0, C1)
    k(f"""v_mov_b32 v{t2}, -1
    v_mov_b32 v{t1}, 0xffff0000
    v_cmp_gt_u32 vcc, 16, v{lane}
    v_cndmask_b32 v{t2}, v{t2}, v{t1}, vcc""")
    def lda(ks):
        b = AF + 20 * (ks & 1)
        for jt in range(4):
            for u in range(2):
                k(f"ds_read_b64_tr_b16 {v(b+4*jt+2*u,2)}, v{(va0,va1)[jt>>1]} offset:{ks*4096+u*512+8*(jt&1)}")
        for u in range(2):
            k(f"ds_read_b64_tr_b16 {v(b+16+2*u,2)}, v{vag} offset:{ks*4096+u*512}")
    starts = {0: 3, 3: 6, 6: 10, 10: 14}
    def sync_for(ks):
        e = starts[ks]
        k(f"s_waitcnt vmcnt({4*(14-e)})\ns_barrier")
    sync_for(0); lda(0)
    for ks in range(14):
        if ks + 1 < 14:
            if (ks + 1) in starts: sync_for(ks + 1)
            lda(ks + 1); k("s_waitcnt lgkmcnt(10)")
        else: k("s_waitcnt lgkmcnt(0)")
        b = AF + 20 * (ks & 1)
        for jt in range(4):
            for part, D in enumerate((AR, AI, AX)):
                k(f"{mf} {v(D+4*jt,4)}, {v(b+4*jt,4)}, {a(12*ks+4*part,4)}, {'0' if ks==0 else v(D+4*jt,4)}")
        if ks == 0:
            k(f"""v_and_b32 v{TT}, v{t2}, v{b+16}
            v_mov_b32 v{TT+1}, v{b+17}
            v_mov_b32 v{TT+2}, v{b+18}
            v_mov_b32 v{TT+3}, v{b+19}
            {mf} {v(AG,4)}, {v(b+16,4)}, {v(TT,4)}, 0""")
        else:
            k(f"{mf} {v(AG,4)}, {v(b+16,4)}, {v(b+16,4)}, {v(AG,4)}")
    k(f"""v_and_b32 v{t0}, 3, v{lane}
    v_lshrrev_b32 v{t1}, 2, v{vn}
    v_lshl_add_u32 v{t2}, v{t1}, 4, v{t0}
    s_lshl_b32 s{S_T}, s{S_W}, 2
    v_add_u32 v{t2}, s{S_T}, v{t2}
    v_lshlrev_b32 v{t2}, 2, v{t2}           ; t*4
    v_cmp_eq_u32 s[74:75], v{t1}, v{vq}
    v_cmp_eq_u32 vcc, 1, v{t0}
    v_cndmask_b32 v{AG}, v{AG}, v{AG+1}, vcc
    v_cmp_eq_u32 vcc, 2, v{t0}
    v_cndmask_b32 v{AG}, v{AG}, v{AG+2}, vcc
    v_cmp_eq_u32 vcc, 3, v{t0}
    v_cndmask_b32 v{AG}, v{AG}, v{AG+3}, vcc
    v_mov_b32 v{t1}, {fhex(1e-5)}
    v_fmac_f32 v{t1}, {fhex(1/448)}, v{AG}
    v_rsq_f32 v{t1}, v{t1}
    s_mov_b64 exec, s[74:75]
    ds_write_b32 v{t2}, v{t1} offset:57344
    s_mov_b64 exec, -1
    v_lshlrev_b32 v{t0}, 6, v{vq}
    s_waitcnt lgkmcnt(0)
    s_barrier""")
    for j in range(4): k(f"ds_read_b128 {v(RS+4*j,4)}, v{t0} offset:{57344+16*j}")
    XB = AF
    k(f"""v_bfe_u32 v{t1}, v{vp}, 1, 1
    v_lshlrev_b32 v{t2}, 1, v{vq}
    v_xor_b32 v{t1}, v{t1}, v{t2}
    v_lshlrev_b32 v{t1}, 4, v{t1}
    v_lshl_add_u32 v{t1}, v{vp}, 7, v{t1}
    v_lshlrev_b32 v{t2}, 5, v{vq}
    s_cmp_eq_u32 s9, 0
    s_cselect_b64 vcc, -1, 0
    v_cndmask_b32 v{t1}, v{t2}, v{t1}, vcc
    v_xor_b32 v{t2}, 16, v{t1}
    ds_read_b128 {v(XB,4)}, v{t1}
    ds_read_b128 {v(XB+4,4)}, v{t2}
    v_lshlrev_b32 v{t0}, 2, v{vn}
    s_waitcnt lgkmcnt(2)""")
    for t in range(16):
        k(f"v_mul_f32 v{AR+t}, v{AR+t}, v{RS+t}\nv_mul_f32 v{AI+t}, v{AI+t}, v{RS+t}")
    cur = (AR, AI)
    for t in range(1, 16):
        nxt = (TT + 2 * (t & 1), TT + 2 * (t & 1) + 1)
        cmad(k, nxt[0], nxt[1], lr, li, cur[0], cur[1], AR + t, AI + t)
        cur = nxt
    G = AF + 8
    for q in range(4):
        k(f"ds_bpermute_b32 v{G+2*q}, v{t0}, v{cur[0]} offset:{64*q}\nds_bpermute_b32 v{G+2*q+1}, v{t0}, v{cur[1]} offset:{64*q}")
    k("s_waitcnt lgkmcnt(0)")
    P2, P3, EE = TT + 4, TT + 6, TT + 8
    cmad(k, P2, P2+1, p16r, p16i, G, G+1, G+2, G+3)
    cmad(k, P3, P3+1, p16r, p16i, P2, P2+1, G+4, G+5)
    cmad(k, EE, EE+1, p16r, p16i, P3, P3+1, G+6, G+7)
    k(f"""v_mov_b32 v{EE+2}, 1
    v_mov_b32 v{EE+3}, 1
    s_mul_i32 s{S_T}, s{S_C}, 7168
    v_lshlrev_b32 v{t1}, 4, v{vp}
    s_mov_b64 exec, 0xffff
    buffer_store_dwordx4 {v(EE,4)}, v{t1}, s[60:63], s{S_T} offen sc1
    s_mov_b64 exec, -1""")
    PQ = TT + 12
    k(f"""v_mov_b32 v{PQ}, 0
    v_mov_b32 v{PQ+1}, 0
    v_cmp_eq_u32 vcc, 1, v{vq}
    v_cndmask_b32 v{PQ}, v{PQ}, v{G}, vcc
    v_cndmask_b32 v{PQ+1}, v{PQ+1}, v{G+1}, vcc
    v_cmp_eq_u32 vcc, 2, v{vq}
    v_cndmask_b32 v{PQ}, v{PQ}, v{P2}, vcc
    v_cndmask_b32 v{PQ+1}, v{PQ+1}, v{P2+1}, vcc
    v_cmp_eq_u32 vcc, 3, v{vq}
    v_cndmask_b32 v{PQ}, v{PQ}, v{P3}, vcc
    v_cndmask_b32 v{PQ+1}, v{PQ+1}, v{P3+1}, vcc""")
    vst = va0
    m1, mj = k.label("m1"), k.label("mj")
    U = AF + 16
    k(f"""v_lshlrev_b32 v{vst}, 12, v{vp}
    v_lshl_add_u32 v{vst}, v{vq}, 5, v{vst}
    s_lshl_b32 s{S_T}, s{S_C}, 7
    s_add_u32 s8, s8, s{S_T}
    s_add_u32 s5, s5, s{S_T}""")
    for j in range(8):
        k(f"v_lshlrev_b32 v{U+2*j}, 16, v{XB+j}\nv_and_b32 v{U+2*j+1}, 0xffff0000, v{XB+j}")
    k(f"s_cmp_lg_u32 s9, 0\ns_cbranch_scc1 {m1}")
    for t in range(16): k(f"v_fma_f32 v{AX+t}, v{AX+t}, v{RS+t}, v{U+t}")
    k(f"s_branch {mj}\n{m1}:\ns_mov_b32 s{S_T}, {fhex(-1/np.sqrt(448))}")
    for t in range(16):
        k(f"""v_fma_f32 v{U+t}, v{U+t}, s{S_T}, v{AX+t}
        v_mul_f32 v{RS+t}, v{RS+t}, v{dsk}
        v_fmac_f32 v{AX+t}, v{U+t}, v{RS+t}""")
    k(f"{mj}:")
    for j in range(8): k(f"v_cvt_pk_bf16_f32 v{XB+j}, v{AX+2*j}, v{AX+2*j+1}")
    k(f"""buffer_store_dwordx4 {v(XB,4)}, v{vst}, s[48:51], s8 offen
    buffer_store_dwordx4 {v(XB+4,4)}, v{vst}, s[48:51], s8 offen offset:16""")
    LB = AX
    def lbreg(r): return (AX + 4 * r) if r < 4 else (RS + 4 * (r - 4))
    lp, lo = k.label("poll"), k.label("pollx")
    k(f"s_mov_b32 s74, 100000\n{lp}:")
    for r in range(8): k(f"buffer_load_dwordx4 {v(lbreg(r),4)}, v{EO+r}, s[60:63], 0 offen sc1")
    k("s_waitcnt vmcnt(0)")
    k(f"v_lshrrev_b32 v{t0}, 31, v{EO}\nv_or_b32 v{t0}, v{t0}, v{lbreg(0)+2}")
    for r in range(1, 8):
        k(f"""v_lshrrev_b32 v{t1}, 31, v{EO+r}
        v_or_b32 v{t1}, v{t1}, v{lbreg(r)+2}
        v_and_b32 v{t0}, v{t0}, v{t1}""")
    k(f"""v_cmp_ne_u32 vcc, 1, v{t0}
    s_cbranch_vccz {lo}
    s_sleep 1
    s_sub_u32 s74, s74, 1
    s_cmp_lg_u32 s74, 0
    s_cbranch_scc1 {lp}
    {lo}:""")
    cur = (lbreg(7), lbreg(7) + 1)
    for r in range(6, -1, -1):
        nxt = (TT + 2 * (r & 1), TT + 2 * (r & 1) + 1)
        cmad(k, nxt[0], nxt[1], Lr, Li, cur[0], cur[1], lbreg(r), lbreg(r) + 1)
        cur = nxt
    CR, CI = TT + 4, TT + 5
    cmul(k, CR, CI, pLr, pLi, cur[0], cur[1])
    for op in ("v_permlane16_swap_b32", "v_permlane32_swap_b32"):
        k(f"""v_mov_b32 v{TT}, v{CR}
        v_mov_b32 v{TT+1}, v{CI}
        {op} v{CR}, v{TT}
        {op} v{CI}, v{TT+1}
        v_add_f32 v{CR}, v{CR}, v{TT}
        v_add_f32 v{CI}, v{CI}, v{TT+1}""")
    cmad(k, TT, TT+1, pqr, pqi, CR, CI, PQ, PQ+1)
    cur = (TT, TT + 1)
    for t in range(16):
        k(f"""v_fmac_f32 v{AR+t}, v{lr}, v{cur[0]}
        v_fmac_f32 v{AI+t}, v{lr}, v{cur[1]}
        v_fma_f32 v{AR+t}, -v{li}, v{cur[1]}, v{AR+t}
        v_fmac_f32 v{AI+t}, v{li}, v{cur[0]}""")
        cur = (AR + t, AI + t)
    O = AF + 16
    for j in range(8): k(f"v_cvt_pk_bf16_f32 v{O+j}, v{AR+2*j}, v{AR+2*j+1}")
    k(f"""buffer_store_dwordx4 {v(O,4)}, v{vst}, s[48:51], s5 offen
    buffer_store_dwordx4 {v(O+4,4)}, v{vst}, s[48:51], s5 offen offset:16
    s_add_u32 s5, s5, {448*4096}""")
    for j in range(8): k(f"v_cvt_pk_bf16_f32 v{O+8+j}, -v{AI+2*j}, -v{AI+2*j+1}")
    k(f"""buffer_store_dwordx4 {v(O+8,4)}, v{vst}, s[48:51], s5 offen
    buffer_store_dwordx4 {v(O+12,4)}, v{vst}, s[48:51], s5 offen offset:16
    s_endpgm""")

def entry(k, xin, ht, e, xo, mode, tail):
    k(f"""s_load_dwordx4 s[24:27], s[0:1], 32
    s_load_dwordx4 s[36:39], s[0:1], 80
    s_load_dwordx2 s[44:45], s[0:1], 112
    s_cmp_ge_u32 s2, 224
    s_cbranch_scc1 L_{k.name}_x
    s_mov_b32 s4, {xin}
    s_mov_b32 s5, {ht}
    s_mov_b32 s6, {e}
    s_mov_b32 s8, {xo}
    s_mov_b32 s9, {mode}
    {tail}""")

def build_k3():
    k = Kernel("k3")
    entry(k, X1T, HT1, E1, X1P, 0, "L_k3_body:")
    body(k)
    k("L_k3_x:\ns_endpgm")
    k6 = Kernel("k6")
    entry(k6, X3T, HT2, E2, RT, 1, "s_branch L_k3_body")
    k6("L_k6_x:\ns_endpgm")
    info = dict(grid=224, lds=K3_LDS, nv=160, na=168, ns=80)
    return (k, info), (k6, info)
```

```python
from common import *
from k1 import wave_lane

XOFF = 896 * 128
K4_LDS = XOFF + 16384

def body(k):
    S_C, S_J, S_T, S_W, S_KH, S_NH, S_G, S_WB = 12, 13, 14, 7, 15, 16, 17, 18
    lane, l16, t0, t1, t2, vdma, va0, va1, vst = 1, 2, 3, 4, 5, 6, 7, 8, 9
    XB = 12
    D0, D1 = 20, 36
    AF = 52
    T = 68
    mf = "v_mfma_f32_32x32x16_bf16"
    decode_cj(k, 2, S_C, S_J, S_T)
    wave_lane(k, S_W, lane, t0)
    k(f"""v_lshlrev_b32 v{l16}, 4, v{lane}
    s_lshr_b32 s{S_KH}, s{S_W}, 1
    s_and_b32 s{S_NH}, s{S_W}, 1
    v_lshrrev_b32 v{t0}, 3, v{lane}
    v_lshlrev_b32 v{vdma}, 12, v{t0}
    v_bfe_u32 v{t0}, v{lane}, 4, 1
    v_lshlrev_b32 v{t0}, 1, v{t0}
    v_and_b32 v{t1}, 7, v{lane}
    v_xor_b32 v{t0}, v{t0}, v{t1}
    v_lshl_add_u32 v{vdma}, v{t0}, 4, v{vdma}
    s_mul_i32 s{S_T}, s{S_KH}, 448
    s_lshl_b32 s19, s{S_NH}, 3
    s_add_u32 s{S_T}, s{S_T}, s19
    s_lshl_b32 s19, s{S_T}, 7
    s_mov_b32 m0, s19
    s_lshl_b32 s{S_G}, s{S_T}, 12
    s_lshl_b32 s19, s{S_C}, 7
    s_add_u32 s{S_G}, s{S_G}, s19
    s_add_u32 s{S_G}, s{S_G}, s4
    s_lshl_b32 s{S_WB}, s{S_J}, 1
    s_add_u32 s{S_WB}, s{S_WB}, s{S_NH}     ; js*2+nh
    s_lshl_b32 s20, s{S_WB}, 5
    s_lshl_b32 s{S_WB}, s{S_WB}, 1
    s_add_u32 s{S_WB}, s{S_WB}, s{S_KH}
    s_mul_i32 s{S_WB}, s{S_WB}, {28*1024}
    s_add_u32 s{S_WB}, s{S_WB}, s5
    v_and_b32 v{t0}, 31, v{lane}
    v_add_u32 v{t2}, s20, v{t0}             ; column
    v_lshlrev_b32 v{vst}, 12, v{t2}
    v_lshrrev_b32 v{t1}, 5, v{lane}
    v_lshl_add_u32 v{vst}, v{t1}, 6, v{vst}
    s_lshl_b32 s21, s{S_KH}, 5
    s_add_u32 s21, s21, s19                 ; (64c + 16kh)*2
    s_add_u32 s6, s6, s21
    s_add_u32 s8, s8, s21
    s_waitcnt lgkmcnt(0)""")
    srd(k, 48, 44, WS_BYTES)
    for ks in range(28):
        if ks:
            k(f"s_add_u32 s{S_G}, s{S_G}, {16*4096}\ns_add_u32 m0, m0, 2048")
            if ks % 4 == 0: k(f"s_add_u32 s{S_WB}, s{S_WB}, 4096")
        k(f"""buffer_load_dwordx4 v{vdma}, s[48:51], s{S_G} offen lds
        buffer_load_dwordx4 {a(4*ks,4)}, v{l16}, s[48:51], s{S_WB} offen offset:{1024*(ks%4)}""")
    k(f"""buffer_load_dwordx4 {v(XB,4)}, v{vst}, s[48:51], s6 offen
    buffer_load_dwordx4 {v(XB+4,4)}, v{vst}, s[48:51], s6 offen offset:16""")
    k(f"""v_lshrrev_b32 v{t0}, 5, v{lane}
    v_bfe_u32 v{t1}, v{lane}, 2, 2
    v_lshl_add_u32 v{t0}, v{t0}, 3, v{t1}       ; 8h + r
    v_lshlrev_b32 v{va0}, 7, v{t0}
    v_and_b32 v{t0}, 1, v{lane}
    v_lshlrev_b32 v{t0}, 2, v{t0}
    v_bfe_u32 v{t1}, v{lane}, 4, 1
    v_add_u32 v{t0}, v{t0}, v{t1}
    v_bfe_u32 v{t1}, v{lane}, 3, 1
    v_lshlrev_b32 v{t1}, 1, v{t1}
    v_xor_b32 v{t0}, v{t0}, v{t1}
    v_lshl_add_u32 v{va0}, v{t0}, 4, v{va0}
    v_bfe_u32 v{t1}, v{lane}, 1, 1
    v_lshl_add_u32 v{va0}, v{t1}, 3, v{va0}
    s_lshl_b32 s19, s{S_KH}, 5
    v_xor_b32 v{va0}, s19, v{va0}
    s_mul_i32 s19, s{S_KH}, 57344
    v_add_u32 v{va0}, s19, v{va0}
    v_xor_b32 v{va1}, 32, v{va0}""")
    def lda(ks):
        b = AF + 8 * (ks & 1)
        for mt in range(2):
            for u in range(2):
                k(f"ds_read_b64_tr_b16 {v(b+4*mt+2*u,2)}, v{(va0,va1)[mt]} offset:{ks*2048+u*512}")
    starts = {0: 4, 4: 10, 10: 18, 18: 28}
    def sync_for(ks):
        k(f"s_waitcnt vmcnt({2*(28-starts[ks])+2})\ns_barrier")
    sync_for(0); lda(0)
    for ks in range(28):
        if ks + 1 < 28:
            if (ks + 1) in starts: sync_for(ks + 1)
            lda(ks + 1); k("s_waitcnt lgkmcnt(4)")
        else: k("s_waitcnt lgkmcnt(0)")
        b = AF + 8 * (ks & 1)
        k(f"{mf} {v(D0,16)}, {v(b,4)}, {a(4*ks,4)}, {'0' if ks==0 else v(D0,16)}")
        k(f"{mf} {v(D1,16)}, {v(b+4,4)}, {a(4*ks,4)}, {'0' if ks==0 else v(D1,16)}")
    k(f"""s_lshl_b32 s19, s{S_W}, 12
    v_add_u32 v{t0}, s19, v{l16}
    v_xor_b32 v{t1}, 0x2000, v{t0}
    v_add_u32 v{t0}, {XOFF}, v{t0}
    v_add_u32 v{t1}, {XOFF}, v{t1}""")
    for j in range(4): k(f"ds_write_b128 v{t0}, {v(D1+4*j,4)} offset:{1024*j}")
    k("s_waitcnt vmcnt(0)")
    for j in range(8):
        k(f"v_lshlrev_b32 v{T+2*j}, 16, v{XB+j}\nv_and_b32 v{T+2*j+1}, 0xffff0000, v{XB+j}")
    for t in range(16): k(f"v_add_f32 v{D0+t}, v{D0+t}, v{T+t}")
    k("s_waitcnt lgkmcnt(0)\ns_barrier")
    for j in range(4): k(f"ds_read_b128 {v(D1+4*j,4)}, v{t1} offset:{1024*j}")
    for j in range(4):
        k(f"s_waitcnt lgkmcnt({3-j})")
        for t in range(4*j, 4*j+4): k(f"v_add_f32 v{D0+t}, v{D0+t}, v{D1+t}")
    m1 = k.label("m1")
    k(f"s_cmp_lg_u32 s9, 0\ns_cbranch_scc1 {m1}")
    for j in range(8): k(f"v_cvt_pk_bf16_f32 v{XB+j}, v{D0+2*j}, v{D0+2*j+1}")
    k(f"""buffer_store_dwordx4 {v(XB,4)}, v{vst}, s[48:51], s8 offen
    buffer_store_dwordx4 {v(XB+4,4)}, v{vst}, s[48:51], s8 offen offset:16
    v_cmp_ne_u32 vcc, 0, v{t2}
    v_cndmask_b32 v{t0}, 0, v{D0}, vcc""")
    for t in range(16):
        if t: k(f"v_cndmask_b32 v{t0}, 0, v{D0+t}, vcc")
        k(f"v_mul_f32 v{T+t}, v{t0}, v{D0+t}")
    for t in range(8):
        k(f"v_permlane16_swap_b32 v{T+t}, v{T+8+t}")
    for t in range(8):
        k(f"v_add_f32 v{T+t}, v{T+t}, v{T+8+t}")
    def rs(nout, bit, dpp):
        k(f"v_and_b32 v{t0}, {bit}, v{lane}\nv_cmp_ne_u32 vcc, 0, v{t0}")
        for i in range(nout):
            k(f"""v_cndmask_b32 v{T+8+i}, v{T+nout+i}, v{T+i}, vcc
            v_cndmask_b32 v{T+i}, v{T+i}, v{T+nout+i}, vcc""")
        for i in range(nout):
            k(f"v_add_f32_dpp v{T+i}, v{T+8+i}, v{T+i} {dpp} row_mask:0xf bank_mask:0xf")
    rs(4, 8, "row_ror:8"); rs(2, 4, "row_half_mirror"); rs(1, 2, "quad_perm:[2,3,0,1]")
    k(f"""v_add_f32_dpp v{T}, v{T}, v{T} quad_perm:[1,0,3,2] row_mask:0xf bank_mask:0xf
    v_bfe_u32 v{t0}, v{lane}, 1, 4
    v_lshrrev_b32 v{t1}, 5, v{lane}
    v_lshl_add_u32 v{t0}, v{t1}, 5, v{t0}
    v_lshlrev_b32 v{t0}, 2, v{t0}
    s_lshl_b32 s21, s21, 1
    s_add_u32 s21, s21, {SSQ2}
    s_mov_b32 exec_lo, 0x55555555
    s_mov_b32 exec_hi, 0x55555555
    buffer_atomic_add_f32 v{T}, v{t0}, s[48:51], s21 offen
    s_endpgm
    {m1}:""")
    srd(k, 52, 40, 2048 * 448 * 4)
    k(f"""s_mul_i32 s21, s21, 896
    v_lshrrev_b32 v{t1}, 5, v{lane}
    v_mul_u32_u24 v{t1}, {32*1792}, v{t1}
    v_lshl_add_u32 v{t1}, v{t2}, 2, v{t1}""")
    for t in range(16):
        if t and t % 2 == 0: k(f"s_add_u32 s21, s21, 3584")
        k(f"buffer_store_dword v{D0+t}, v{t1}, s[52:55], s21 offen offset:{1792*(t&1)}")
    k("s_endpgm")

def entry(k, ht, wb, xi, xo, mode, tail):
    k(f"""s_load_dwordx2 s[40:41], s[0:1], 96
    s_load_dwordx2 s[44:45], s[0:1], 112
    s_cmp_ge_u32 s2, 224
    s_cbranch_scc1 L_{k.name}_x
    s_mov_b32 s4, {ht}
    s_mov_b32 s5, {wb}
    s_mov_b32 s6, {xi}
    s_mov_b32 s8, {xo}
    s_mov_b32 s9, {mode}
    {tail}""")

def build_k4():
    k = Kernel("k4")
    entry(k, HT1, WC, X1P, X2T, 0, "L_k4_body:")
    body(k)
    k("L_k4_x:\ns_endpgm")
    k7 = Kernel("k7")
    entry(k7, HT2, WC7, RT, 0, 1, "s_branch L_k4_body")
    k7("L_k7_x:\ns_endpgm")
    info = dict(grid=224, lds=K4_LDS, nv=84, na=112, ns=64)
    return (k, info), (k7, info)
```

```python
X0T = 0x000000
X1T = 0x200000
X1P = 0x400000
X2T = 0x600000
X3T = 0x800000
RT  = 0xA00000
HT1 = 0xC00000
HT2 = 0x1000000
WT  = 0x1400000
WBB = 0x1600000
WBD = 0x1700000
WC  = 0x1800000
WC7 = 0x1900000
SSQ0 = 0x1A00000
SSQ2 = 0x1A02000
SP0 = 0x1A10000
SP2 = 0x1A20000
E1  = 0x1B00000
E2  = E1 + 32*448*16
XID = E2 + 32*448*16
WS_BYTES = 0x2000000
KA = dict(x=0, wr=8, wi=16, lre=32, lim=40, bre=48, bim=56, cre=64, cim=72, ldt=80, dsk=88, out=96, dbg=104, ws=112)
```

```python
import sys
from common import *
import k1, k2
HDR = open("interleave_layers__spectral_gfnet__ssm_conv_s5__prompt.s.ref").read().split("; Override launch")[0]
def assemble(kernels, launches, tables, path):
    out = [HDR.rstrip()]
    info = {n: i for n, _, i in kernels}
    for n in launches:
        out.append(f"; @launch kernel={n}_kernel grid=({info[n]['grid']},1,1) block=(256,1,1) lds={info[n]['lds']}")
    out.append('.amdgcn_target "amdgcn-amd-amdhsa--gfx950"\n.text')
    for n, kk, i in kernels:
        out.append(f".globl {n}_kernel\n.p2align 8\n.type {n}_kernel,@function\n{n}_kernel:")
        out.extend(kk.finish())
    out.append('.section .rodata,"a"')
    for n, kk, i in kernels:
        if n in launches: out.append(descriptor(n + "_kernel", i["nv"], i["na"], i["ns"]))
    out.append(tables)
    open(path, "w").write("\n".join(out) + "\n")
if __name__ == "__main__":
    ks = []
    a, i = k1.build_k1(); ks.append(("k1", a, i))
    (a, i), (b, j) = k2.build_k2(); ks.append(("k2", a, i)); ks.append(("k5", b, j))
    launches = ["k1", "k2"]
    try:
        import k3
        (a, i), (b, j) = k3.build_k3(); ks.append(("k3", a, i)); ks.append(("k6", b, j)); launches.append("k3")
        import k4
        (a, i), (b, j) = k4.build_k4(); ks.append(("k4", a, i)); ks.append(("k7", b, j)); launches += ["k4", "k5", "k6", "k7"]
    except ImportError as e:
        print("partial build:", e)
    path = sys.argv[1] if len(sys.argv) > 1 else "out.s"
    assemble(ks, launches, q_tables() + "\n" + k2.fft_table(), path)
```

```python
import re
from asmlib import *
STAMP = 0x1C00000
def instrument(lines, launch_idx_sgpr_setup):
    pass

def add_stamps(name, lines, idx):
    pre = [f"s_memrealtime s[96:97]", f"s_mov_b32 s98, {idx}", "s_memtime s[94:95]"]
    return pre + lines

END = """s_waitcnt vmcnt(0) lgkmcnt(0)
s_memrealtime s[92:93]
s_memtime s[90:91]
s_load_dwordx4 s[84:87], s[0:1], 104
s_waitcnt lgkmcnt(0)
s_lshl_b32 s88, s98, 9
s_sub_u32 s84, s84, s88
s_subb_u32 s85, s85, 0
s_lshl_b32 s88, s98, 3
s_add_u32 s84, s84, s88
s_addc_u32 s85, s85, 0
s_not_b32 s88, s96
s_mov_b64 exec, 1
v_mov_b32 v1, s88
v_mov_b32 v2, s92
v_mov_b32 v3, 0
global_atomic_umax v3, v1, s[84:85]
global_atomic_umax v3, v2, s[84:85] offset:4
s_lshl_b32 s88, s98, 9
s_add_u32 s88, s88, s2
s_lshl_b32 s88, s88, 5
s_add_u32 s88, s88, %d
s_add_u32 s86, s86, s88
s_addc_u32 s87, s87, 0
s_sub_u32 s90, s90, s94
v_mov_b32 v4, s96
v_mov_b32 v5, s92
v_mov_b32 v6, s90
v_readfirstlane_b32 s88, v0
s_getreg_b32 s89, hwreg(HW_REG_XCC_ID)
v_mov_b32 v7, s89
s_cmp_lt_u32 s88, 64
s_cbranch_scc0 1f
global_store_dwordx4 v3, v[4:7], s[86:87]
1:
s_endpgm""" % STAMP
def patch_end(lines):
    out = []
    for l in lines:
        if l.strip() == "s_endpgm": out.extend(END.split("\n"))
        else: out.append(l)
    return out
```

```python
import sys
from common import *
import k1, k2
HDR = open("interleave_layers__spectral_gfnet__ssm_conv_s5__prompt.s.ref").read().split("; Override launch")[0]
import os
STAMPS = bool(os.environ.get('STAMPS'))
def assemble(kernels, launches, tables, path):
    out = [HDR.rstrip()]
    info = {n: i for n, _, i in kernels}
    for n in launches:
        out.append(f"; @launch kernel={n}_kernel grid=({info[n]['grid']},1,1) block=(256,1,1) lds={info[n]['lds']}")
    out.append('.amdgcn_target "amdgcn-amd-amdhsa--gfx950"\n.text')
    for n, kk, i in kernels:
        out.append(f".globl {n}_kernel\n.p2align 8\n.type {n}_kernel,@function\n{n}_kernel:")
        L = kk.finish()
        if STAMPS and n in launches:
            import instr
            L = instr.patch_end(instr.add_stamps(n, L, launches.index(n)))
        out.extend(L)
    out.append('.section .rodata,"a"')
    for n, kk, i in kernels:
        if n in launches: out.append(descriptor(n + "_kernel", i["nv"], i["na"], 102 if STAMPS else i["ns"]))
    out.append(tables)
    open(path, "w").write("\n".join(out) + "\n")
if __name__ == "__main__":
    ks = []
    a, i = k1.build_k1(); ks.append(("k1", a, i))
    (a, i), (b, j) = k2.build_k2(); ks.append(("k2", a, i)); ks.append(("k5", b, j))
    launches = ["k1", "k2"]
    try:
        import k3
        (a, i), (b, j) = k3.build_k3(); ks.append(("k3", a, i)); ks.append(("k6", b, j)); launches.append("k3")
        import k4
        (a, i), (b, j) = k4.build_k4(); ks.append(("k4", a, i)); ks.append(("k7", b, j)); launches += ["k4", "k5", "k6", "k7"]
    except ImportError as e:
        print("partial build:", e)
    path = sys.argv[1] if len(sys.argv) > 1 else "out.s"
    assemble(ks, launches, q_tables() + "\n" + k2.fft_table(), path)
```

```python
import re

def v(i, n=1):
    return f"v{i}" if n == 1 else f"v[{i}:{i+n-1}]"
def a(i, n=1):
    return f"a{i}" if n == 1 else f"a[{i}:{i+n-1}]"
def s(i, n=1):
    return f"s{i}" if n == 1 else f"s[{i}:{i+n-1}]"

class Alloc:
    def __init__(self, lo, hi):
        self.lo, self.hi = lo, hi
        self.used = set()
        self.hwm = lo
    def get(self, n=1, align=None):
        if align is None:
            align = 1 if n == 1 else (2 if n == 2 else 4)
        i = self.lo
        while True:
            i = (i + align - 1) // align * align
            if i + n > self.hi:
                raise RuntimeError(f"out of registers (need {n})")
            if all((i + k) not in self.used for k in range(n)):
                for k in range(n): self.used.add(i + k)
                self.hwm = max(self.hwm, i + n)
                return i
            i += 1
    def free(self, i, n=1):
        for k in range(n):
            assert (i + k) in self.used, (i, n)
            self.used.remove(i + k)

_reg_re = re.compile(r"^-?\|?(?:abs\()?-?([vas])(?:(\d+)|\[(\d+):(\d+)\])\)?\|?$")
def parse_reg(op):
    op = op.strip()
    if op in ("vcc",): return [("s", "vcc_lo"), ("s", "vcc_hi")]
    if op in ("vcc_lo", "vcc_hi", "m0", "exec_lo", "exec_hi"): return [("s", op)]
    if op == "exec": return [("s", "exec_lo"), ("s", "exec_hi")]
    m = _reg_re.match(op)
    if not m: return []
    k = m.group(1)
    if m.group(2) is not None: return [(k, int(m.group(2)))]
    return [(k, i) for i in range(int(m.group(3)), int(m.group(4)) + 1)]

TRANS = ("v_exp_f32", "v_log_f32", "v_rcp_f32", "v_rsq_f32", "v_sqrt_f32", "v_sin_f32", "v_cos_f32", "v_rcp_iflag_f32")

class Ins:
    __slots__ = ("text", "mn", "ops", "mods", "rd", "wr", "kind", "passes", "srcc", "srcab", "is_label", "dpp", "sgpr_rd_vmem", "store_data", "lanesel", "target")
    def __init__(self, text):
        self.text = text
        t = text.split(";")[0].strip()
        self.is_label = t.endswith(":")
        self.rd = set(); self.wr = set(); self.kind = "other"; self.passes = 0
        self.srcc = set(); self.srcab = set(); self.dpp = False; self.store_data = set(); self.lanesel = set(); self.target = None
        self.mn = ""; self.ops = []; self.mods = ""
        if self.is_label or not t or t.startswith("."):
            self.kind = "label" if self.is_label else "dir"
            return
        parts = t.split(None, 1)
        self.mn = mn = parts[0]
        rest = parts[1] if len(parts) > 1 else ""
        ops = []; cur = ""; depth = 0
        for ch in rest:
            if ch in "[(": depth += 1
            if ch in "])": depth -= 1
            if ch == "," and depth == 0: ops.append(cur.strip()); cur = ""
            else: cur += ch
        if cur.strip(): ops.append(cur.strip())
        if ops:
            w = ops[-1].split(None, 1)
            ops[-1] = w[0]
            self.mods = w[1] if len(w) > 1 else ""
        self.ops = ops
        R = lambda i: set(parse_reg(ops[i])) if i < len(ops) else set()
        base = re.sub(r"_(e32|e64|dpp|sdwa)$", "", mn)
        if mn.startswith("v_mfma"):
            self.kind = "mfma"
            self.passes = 8 if "32x32x16" in mn else (4 if "16x16x32" in mn else None)
            assert self.passes, mn
            self.wr = R(0); self.srcab = R(1) | R(2); self.srcc = R(3); self.rd = self.srcab | self.srcc
        elif mn.startswith("v_"):
            self.kind = "valu"
            if base in TRANS: self.kind = "trans"
            if base.startswith("v_dot2"): self.kind = "dot"
            self.dpp = mn.endswith("_dpp") or "quad_perm" in self.mods or "row_" in self.mods
            if base.startswith("v_cmp"):
                self.wr = R(0); self.rd = R(1) | R(2)
                assert not base.startswith("v_cmpx"), "avoid cmpx"
            elif base in ("v_readfirstlane_b32", "v_readlane_b32"):
                self.kind = "readlane"; self.wr = R(0); self.rd = R(1) | R(2); self.lanesel = R(2)
            elif base == "v_writelane_b32":
                self.wr = R(0); self.rd = R(0) | R(1) | R(2); self.lanesel = R(2)
            elif base.startswith("v_permlane"):
                self.kind = "permlane"; self.wr = R(0) | R(1); self.rd = R(0) | R(1)
            elif base in ("v_add_co_u32", "v_sub_co_u32", "v_subrev_co_u32"):
                self.wr = R(0) | R(1); self.rd = R(2) | R(3)
            elif base in ("v_addc_co_u32", "v_subb_co_u32"):
                self.wr = R(0) | R(1); self.rd = R(2) | R(3) | R(4)
            elif base in ("v_fmac_f32", "v_dot2c_f32_bf16", "v_pk_fmac_f16"):
                self.wr = R(0); self.rd = R(0) | R(1) | R(2)
            elif base == "v_cndmask_b32":
                self.wr = R(0); self.rd = R(1) | R(2) | (R(3) if len(ops) > 3 else set(parse_reg("vcc")))
            elif base == "v_nop":
                pass
            else:
                self.wr = R(0)
                for i in range(1, len(ops)): self.rd |= R(i)
                if self.dpp or "UNUSED_PRESERVE" in self.mods: self.rd |= R(0)
        elif mn.startswith("ds_"):
            self.kind = "ds"
            if mn.startswith("ds_read") or mn.startswith("ds_bpermute") or mn.startswith("ds_permute") or mn.startswith("ds_swizzle"):
                self.wr = R(0)
                for i in range(1, len(ops)): self.rd |= R(i)
                if "d16" in mn: self.rd |= R(0)
            else:
                for i in range(len(ops)): self.rd |= R(i)
        elif mn.startswith("buffer_"):
            self.kind = "vmem"
            lds = re.search(r"\blds\b", self.mods) is not None
            if mn.startswith("buffer_load") and lds:
                self.kind = "vmem_lds"
                for i in range(len(ops)): self.rd |= R(i)
                self.rd.add(("s", "m0"))
            elif mn.startswith("buffer_load"):
                self.wr = R(0)
                for i in range(1, len(ops)): self.rd |= R(i)
                if "d16" in mn: self.rd |= R(0)
            elif mn.startswith("buffer_store") or mn.startswith("buffer_atomic"):
                for i in range(len(ops)): self.rd |= R(i)
                if "x3" in mn or "x4" in mn: self.store_data = R(0)
                if mn.startswith("buffer_atomic") and "sc0" in self.mods: self.wr = R(0)
            else:
                self.kind = "vmem_misc"
        elif mn.startswith("global_"):
            self.kind = "vmem"
            if mn.startswith("global_load_lds"):
                self.kind = "vmem_lds"
                for i in range(len(ops)): self.rd |= R(i)
                self.rd.add(("s", "m0"))
            elif mn.startswith("global_load"):
                self.wr = R(0)
                for i in range(1, len(ops)): self.rd |= R(i)
            else:
                for i in range(len(ops)): self.rd |= R(i)
                if "x3" in mn or "x4" in mn: self.store_data = R(1)
        elif mn.startswith("s_"):
            self.kind = "salu"
            if mn.startswith("s_load") or mn.startswith("s_buffer_load") or mn in ("s_memtime", "s_memrealtime"):
                self.kind = "smem"; self.wr = R(0)
                for i in range(1, len(ops)): self.rd |= R(i)
            elif mn in ("s_waitcnt", "s_barrier", "s_nop", "s_endpgm", "s_sleep", "s_setprio"):
                self.kind = mn
            elif mn.startswith("s_cbranch") or mn == "s_branch":
                self.kind = "branch"; self.target = ops[0]
                if "vcc" in mn: self.rd = set(parse_reg("vcc"))
            elif mn.startswith("s_cmp") or mn.startswith("s_bitcmp"):
                for i in range(len(ops)): self.rd |= R(i)
            elif "saveexec" in mn:
                self.wr = R(0) | set(parse_reg("exec")); self.rd = R(1) | set(parse_reg("exec"))
            else:
                self.wr = R(0)
                for i in range(1, len(ops)): self.rd |= R(i)
                if mn in ("s_addk_i32", "s_mulk_i32"): self.rd |= R(0)
        else:
            raise ValueError("unknown instruction: " + text)
    def states(self):
        if self.kind in ("label", "dir"): return 0
        if self.kind == "s_nop": return int(self.ops[0], 0) + 1
        return 1

VALU_KINDS = ("valu", "trans", "dot", "readlane", "permlane")
def need(prod, cons):
    n = 0
    pk, ck = prod.kind, cons.kind
    pw_v = {r for r in prod.wr if r[0] in "va"}
    pw_s = {r for r in prod.wr if r[0] == "s"}
    if pk in VALU_KINDS:
        if ck == "mfma" and (pw_v & cons.rd): n = max(n, 2)
        if pk == "trans" and ck in VALU_KINDS + ("mfma",) and ck != "trans" and (pw_v & cons.rd): n = max(n, 1)
        if pk == "trans" and ck == "trans" and (pw_v & cons.rd): n = max(n, 1)
        if pk == "dot" and ck in VALU_KINDS + ("mfma", "ds", "vmem") and (pw_v & (cons.rd | cons.wr)):
            same = (cons.mn == prod.mn)
            if same and ck == "dot":
                ab = set()
                for i in (1, 2): ab |= set(parse_reg(cons.ops[i]))
                if pw_v & ab: n = max(n, 3)
            else: n = max(n, 3)
        if ck == "readlane" and (pw_v & cons.rd): n = max(n, 1)
        if ck == "permlane" and (pw_v & cons.rd): n = max(n, 2)
        if cons.dpp and (pw_v & cons.rd): n = max(n, 2)
        if pw_s:
            if ck in VALU_KINDS + ("mfma",) and (pw_s & cons.rd): n = max(n, 2)
            if cons.lanesel & pw_s: n = max(n, 4)
            if ck in ("vmem", "vmem_lds") and (pw_s & cons.rd): n = max(n, 5)
            if ck in ("salu", "branch", "smem") and (pw_s & cons.rd): n = max(n, 1)
        if ("sdwa" in prod.mn and "dst_sel:DWORD" not in prod.mods) and ck in VALU_KINDS and (pw_v & (cons.rd | cons.wr)): n = max(n, 1)
    if pk == "mfma":
        big = prod.passes == 8
        D = prod.wr
        if ck == "mfma":
            if D & cons.srcab: n = max(n, 12 if big else 8)
            if D & cons.srcc:
                if not (cons.srcc == D and cons.passes == prod.passes): n = max(n, 10 if big else 6)
            elif D & cons.wr: n = max(n, 12 if big else 8)
        elif ck in VALU_KINDS + ("ds", "vmem", "vmem_lds"):
            if D & (cons.rd | cons.wr): n = max(n, 12 if big else 8)
        if ck in VALU_KINDS and (prod.srcc & cons.wr): n = max(n, 7 if big else 3)
        if ck in ("ds", "vmem") and (prod.srcc & cons.wr): n = max(n, 7 if big else 3)
    if pk == "salu" and ("s", "m0") in prod.wr and ck == "vmem_lds": n = max(n, 1)
    if prod.store_data:
        if ck in VALU_KINDS + ("mfma",) and (prod.store_data & cons.wr): n = max(n, 2)
        elif prod.store_data & cons.wr: n = max(n, 1)
    return n

WINDOW = 14
def fix_hazards(lines):
    ins = [Ins(l) for l in lines]
    labels = {}
    for i, x in enumerate(ins):
        if x.is_label: labels[x.text.split(";")[0].strip()[:-1]] = i
    out = []
    def required(hist, cons):
        d = 0; req = 0
        for p in reversed(hist):
            if p.kind in ("label", "dir"): continue
            r = need(p, cons)
            if r > d: req = max(req, r - d)
            d += p.states()
            if d >= WINDOW: break
        return req
    def nop(k):
        res = []
        while k > 0:
            m = min(k, 16); res.append(Ins(f"s_nop {m-1}")); k -= m
        return res
    for i, x in enumerate(ins):
        if x.kind in ("label", "dir"):
            out.append(x); continue
        hist = out[-40:]
        r = required(hist, x)
        if r: out.extend(nop(r))
        if x.kind == "branch" and x.target in labels:
            hist2 = out[-40:] + [x]
            extra = 0; d = 0; j = labels[x.target]
            sim = list(hist2)
            while j < len(ins) and d < WINDOW:
                y = ins[j]; j += 1
                if y.kind in ("label", "dir"): continue
                rr = required(sim, y)
                dd = d; req = 0
                for p in reversed(hist2):
                    if p.kind in ("label", "dir"): continue
                    q = need(p, y)
                    if q > dd: req = max(req, q - dd)
                    dd += p.states()
                    if dd >= WINDOW: break
                extra = max(extra, req)
                d += y.states()
                if y.kind == "branch" and y.mn == "s_branch": break
                if y.kind == "s_endpgm": break
            if extra: out.extend(nop(extra))
        out.append(x)
    return out

def check_waits(ins, name=""):
    vm = []
    lg = []
    errs = []
    def touch(x):
        regs = x.rd | x.wr
        for q in vm:
            if q & regs: errs.append(f"{name}: vmcnt hazard at '{x.text.strip()}' regs {sorted(q & regs, key=str)[:4]}")
        for k, q in lg:
            if q & regs:
                if k == "ds" and x.kind == "ds" and not (q & x.rd - x.wr): continue
                errs.append(f"{name}: lgkmcnt hazard at '{x.text.strip()}' regs {sorted(q & regs, key=str)[:4]}")
    for x in ins:
        if x.kind in ("label", "dir"): continue
        if x.kind == "s_waitcnt":
            t = x.text.split(";")[0]
            m = re.search(r"vmcnt\((\d+)\)", t)
            if m:
                n = int(m.group(1))
                while len(vm) > n: vm.pop(0)
            m = re.search(r"lgkmcnt\((\d+)\)", t)
            if m:
                n = int(m.group(1))
                if n == 0: lg.clear()
                else:
                    if any(k == "smem" for k, _ in lg): errs.append(f"{name}: counted lgkmcnt with smem outstanding")
                    while len(lg) > n: lg.pop(0)
            continue
        if x.kind == "s_endpgm":
            vm.clear(); lg.clear(); continue
        touch(x)
        if x.kind in ("vmem", "vmem_lds", "vmem_misc"):
            vm.append(set(x.wr))
            if len(vm) > 63: errs.append(f"{name}: >63 vmem outstanding at '{x.text.strip()}'")
        elif x.kind == "ds":
            lg.append(("ds", set(x.wr)))
        elif x.kind == "smem":
            lg.append(("smem", set(x.wr)))
    return errs

class Kernel:
    def __init__(self, name, nv_max=256, na_max=256):
        self.name = name; self.lines = []
        self.V = Alloc(1, nv_max); self.A = Alloc(0, na_max); self.S = Alloc(4, 100)
        self.uid = 0
    def __call__(self, text):
        for l in text.split("\n"):
            l = l.strip()
            if l: self.lines.append(l)
    def mark(self, i):
        import os
        if os.environ.get("STAMPS"):
            self(f"s_memtime s[{76+2*i}:{77+2*i}]\ns_waitcnt lgkmcnt(0)")
    def label(self, base):
        self.uid += 1
        return f"L_{self.name}_{base}{self.uid}"
    def finish(self):
        ins = fix_hazards(self.lines)
        errs = check_waits(ins, self.name)
        if errs:
            raise RuntimeError("\n".join(errs[:20]))
        return [x.text for x in ins]

def descriptor(name, nv, na, ns):
    acc = max(4, (nv + 3) // 4 * 4)
    nfv = acc + na if na else nv
    return f""".p2align 6
.amdhsa_kernel {name}
  .amdhsa_next_free_vgpr {nfv}
  .amdhsa_next_free_sgpr {ns}
  .amdhsa_accum_offset {acc}
  .amdhsa_group_segment_fixed_size 0
  .amdhsa_kernarg_size 120
  .amdhsa_user_sgpr_count 2
  .amdhsa_user_sgpr_kernarg_segment_ptr 1
  .amdhsa_system_sgpr_workgroup_id_x 1
.end_amdhsa_kernel"""
```

```python
STAMP = 0x1C00000
def add_stamps(name, lines, idx):
    pre = [f"s_memrealtime s[96:97]", f"s_mov_b32 s98, {idx}", "s_memtime s[94:95]"] + [f"s_mov_b32 s{76+2*i}, 0" for i in range(7)]
    return pre + lines
END = """s_waitcnt vmcnt(0) lgkmcnt(0)
s_memrealtime s[92:93]
s_memtime s[90:91]
s_load_dwordx2 s[74:75], s[0:1], 112
s_waitcnt lgkmcnt(0)
s_mov_b64 exec, 1
v_mov_b32 v3, 0
s_lshl_b32 s99, s98, 9
s_add_u32 s99, s99, s2
s_lshl_b32 s99, s99, 6
s_add_u32 s99, s99, %d
s_add_u32 s74, s74, s99
s_addc_u32 s75, s75, 0
s_sub_u32 s90, s90, s94
v_mov_b32 v4, s96
v_mov_b32 v5, s92
v_mov_b32 v6, s90
v_readfirstlane_b32 s99, v0
s_getreg_b32 s93, hwreg(HW_REG_XCC_ID)
v_mov_b32 v7, s93
""" % STAMP + "\n".join(f"s_sub_u32 s{76+2*i}, s{76+2*i}, s94\nv_mov_b32 v{8+i}, s{76+2*i}" for i in range(7)) + """
v_mov_b32 v15, 0
s_cmp_lt_u32 s99, 64
s_cbranch_scc0 1f
global_store_dwordx4 v3, v[4:7], s[74:75]
global_store_dwordx4 v3, v[8:11], s[74:75] offset:16
global_store_dwordx4 v3, v[12:15], s[74:75] offset:32
1:
s_endpgm"""
def patch_end(lines):
    out = []
    for l in lines:
        if l.strip() == "s_endpgm": out.extend(END.split("\n"))
        else: out.append(l)
    return out
```

```python
from common import *

QSTR = 14400
N_A, N_B, N_D, N_C, N_W = 224, 49, 49, 98, 64
K1_GRID = N_A + N_B + N_D + N_C + N_W
K1_LDS = 4 * QSTR

def prologue_ptrs(k):
    k("""s_load_dwordx16 s[16:31], s[0:1], 0
    s_load_dwordx8 s[32:39], s[0:1], 64
    s_load_dwordx4 s[40:43], s[0:1], 96
    s_load_dwordx2 s[44:45], s[0:1], 112""")

def wave_lane(k, s_w, v_lane, vt):
    k(f"""v_lshrrev_b32 v{vt}, 6, v0
    v_and_b32 v{v_lane}, 63, v0
    v_readfirstlane_b32 s{s_w}, v{vt}""")

def q_dma_issue(k, i, v_l16, s_qoff, s_lds):
    if i % 4 == 0:
        if i == 0:
            k(f"s_mov_b32 m0, s{s_lds}")
        else:
            k(f"s_add_u32 s{s_qoff}, s{s_qoff}, 4096\ns_add_u32 m0, m0, 4096")
    k(f"buffer_load_dwordx4 v{v_l16}, s[52:55], s{s_qoff} offen offset:{(i % 4) * 1024} lds")

def job_a(k):
    S_C, S_J, S_T, S_W, S_Q, S_L = 4, 5, 6, 7, 8, 9
    lane, l16, vx, t0, t1, t2 = 1, 2, 3, 4, 5, 6
    XF = 8
    ACC = 64
    BF = 80
    decode_cj(k, 2, S_C, S_J, S_T)
    wave_lane(k, S_W, lane, t0)
    table_ptr(k, 10, "tab_qj")
    srd(k, 52, 10, 28 * 14336)
    k(f"""v_lshlrev_b32 v{l16}, 4, v{lane}
    s_lshl_b32 s{S_Q}, s{S_J}, 2
    s_add_u32 s{S_Q}, s{S_Q}, s{S_W}
    s_mul_i32 s{S_Q}, s{S_Q}, 14336
    s_mul_i32 s{S_L}, s{S_W}, {QSTR}
    v_and_b32 v{t0}, 15, v{lane}
    v_lshrrev_b32 v{t1}, 4, v{lane}
    s_lshl_b32 s12, s{S_C}, 6
    s_lshl_b32 s13, s{S_W}, 4
    s_add_u32 s12, s12, s13          ; row0 = 64c+16w
    v_add_u32 v{t2}, s12, v{t0}
    v_mul_u32_u24 v{vx}, 896, v{t2}
    v_lshl_add_u32 v{vx}, v{t1}, 4, v{vx}""")
    for i in range(7): q_dma_issue(k, i, l16, S_Q, S_L)
    k("s_waitcnt lgkmcnt(0)")
    k.mark(0)
    srd(k, 56, 16, 2048 * 896)
    srd(k, 48, 44, WS_BYTES)
    for i in range(7): k(f"buffer_load_dwordx4 {v(XF+4*i,4)}, v{vx}, s[56:59], 0 offen offset:{64*i}")
    for i in range(7, 14): q_dma_issue(k, i, l16, S_Q, S_L)
    for i in range(7, 14): k(f"buffer_load_dwordx4 {v(XF+4*i,4)}, v{vx}, s[56:59], 0 offen offset:{64*i}")
    k(f"""v_mov_b32 v112, 0
    v_mov_b32 v113, 0
    v_mov_b32 v114, 0
    v_mov_b32 v115, 0
    v_lshlrev_b32 v116, 4, v0
    s_lshl_b32 s14, s2, 11
    s_add_u32 s14, s14, {E1}
    s_cmp_lt_u32 s{S_W}, 2""")
    skip = k.label("noz")
    k(f"""s_cbranch_scc0 {skip}
    buffer_store_dwordx4 v[112:115], v116, s[48:51], s14 offen
    s_waitcnt vmcnt(0)
    {skip}:""")
    def ldb(ks, buf):
        for nt in range(4):
            k(f"ds_read_b128 {v(BF+16*buf+4*nt,4)}, v{l16} offset:{nt*QSTR+ks*1024}")
    k.mark(1)
    k("s_waitcnt vmcnt(14)\ns_barrier")
    k.mark(2)
    ldb(0, 0)
    for ks in range(14):
        if ks == 6:
            k("s_waitcnt vmcnt(0)\ns_barrier")
        if ks + 1 < 14:
            ldb(ks + 1, (ks + 1) & 1)
            k("s_waitcnt lgkmcnt(4)")
        else:
            k("s_waitcnt lgkmcnt(0)")
        for nt in range(4):
            c = "0" if ks == 0 else v(ACC+4*nt, 4)
            k(f"v_mfma_f32_16x16x32_bf16 {v(ACC+4*nt,4)}, {v(XF+4*ks,4)}, {v(BF+16*(ks&1)+4*nt,4)}, {c}")
    k.mark(3)
    k(f"""s_lshl_b32 s13, s{S_J}, 18
    s_lshl_b32 s14, s12, 1
    s_add_u32 s13, s13, s14
    s_add_u32 s13, s13, {X0T}
    v_lshlrev_b32 v{t2}, 12, v{t0}
    v_lshl_add_u32 v{t2}, v{t1}, 3, v{t2}""")
    for nt in range(4):
        k(f"""v_cvt_pk_bf16_f32 v{BF+2*nt}, v{ACC+4*nt}, v{ACC+4*nt+1}
        v_cvt_pk_bf16_f32 v{BF+2*nt+1}, v{ACC+4*nt+2}, v{ACC+4*nt+3}
        buffer_store_dwordx2 {v(BF+2*nt,2)}, v{t2}, s[48:51], s13 offen""")
        if nt < 3: k("s_add_u32 s13, s13, 0x10000")
    done = k.label("adone")
    k(f"s_cmp_lg_u32 s{S_J}, 0\ns_cbranch_scc1 {done}")
    su, sq, su2, sq2 = 96, 97, 98, 99
    k(f"""s_mov_b32 s14, 0x3f803f80
    v_mov_b32 v{su}, 0
    v_mov_b32 v{sq}, 0
    v_mov_b32 v{su2}, 0
    v_mov_b32 v{sq2}, 0""")
    for i in range(0, 56, 2):
        k(f"""v_dot2_f32_bf16 v{su}, v{XF+i}, s14, v{su}
        v_dot2_f32_bf16 v{sq}, v{XF+i}, v{XF+i}, v{sq}
        v_dot2_f32_bf16 v{su2}, v{XF+i+1}, s14, v{su2}
        v_dot2_f32_bf16 v{sq2}, v{XF+i+1}, v{XF+i+1}, v{sq2}""")
    k(f"""v_add_f32 v{su}, v{su}, v{su2}
    v_add_f32 v{sq}, v{sq}, v{sq2}""")
    for op in ("v_permlane16_swap_b32", "v_permlane32_swap_b32"):
        k(f"""v_mov_b32 v{su2}, v{su}
        v_mov_b32 v{sq2}, v{sq}
        {op} v{su}, v{su2}
        {op} v{sq}, v{sq2}
        v_add_f32 v{su}, v{su}, v{su2}
        v_add_f32 v{sq}, v{sq}, v{sq2}""")
    k(f"""v_mul_f32 v{su}, v{su}, v{su}
    v_fmac_f32 v{sq}, {fhex(-1/448)}, v{su}
    v_max_f32 v{sq}, 0, v{sq}
    v_mov_b32 v{su}, 0
    v_lshlrev_b32 v{t2}, 2, v{lane}
    s_lshl_b32 s13, s12, 2
    s_add_u32 s14, s13, {SSQ2}
    s_add_u32 s13, s13, {SSQ0}
    s_mov_b64 exec, 0xffff
    buffer_store_dword v{sq}, v{t2}, s[48:51], s13 offen
    buffer_store_dword v{su}, v{t2}, s[48:51], s14 offen
    {done}:
    s_endpgm""")

def pre_common(k, S_JB, S_W, S_Q, S_L, lane, l16, va, t0, t1, t2):
    table_ptr(k, 10, "tab_qj")
    srd(k, 52, 10, 28 * 14336)
    k(f"""v_lshlrev_b32 v{l16}, 4, v{lane}
    s_lshl_b32 s{S_Q}, s{S_JB}, 2
    s_add_u32 s{S_Q}, s{S_Q}, s{S_W}
    s_mul_i32 s{S_Q}, s{S_Q}, 14336
    s_mul_i32 s{S_L}, s{S_W}, {QSTR}""")
    for i in range(14): q_dma_issue(k, i, l16, S_Q, S_L)
    k(f"""v_bfe_u32 v{t0}, v{lane}, 3, 1
    v_mul_u32_u24 v{va}, {QSTR}, v{t0}
    v_and_b32 v{t0}, 0x30, v{lane}
    v_bfe_u32 v{t1}, v{lane}, 2, 1
    v_lshl_add_u32 v{t0}, v{t1}, 3, v{t0}
    v_and_b32 v{t1}, 3, v{lane}
    v_add_u32 v{t0}, v{t0}, v{t1}
    v_lshl_add_u32 v{va}, v{t0}, 4, v{va}""")

def lda_perm(k, va, ks, base):
    for K in range(2):
        for mt in range(2):
            k(f"ds_read_b128 {v(base+8*K+4*mt,4)}, v{va} offset:{2*K*QSTR+ks*1024+64*mt}")

def job_b(k):
    S_ID, S_JB, S_PB, S_W, S_Q, S_L, S_PT = 4, 5, 6, 7, 8, 9, 12
    lane, l16, va, t0, t1, t2, vb, vp = 1, 2, 3, 4, 5, 6, 7, 8
    lre, lim, ldt, lr, li, cr, ci, msk = 9, 10, 11, 12, 13, 14, 15, 16
    BR, BI = 20, 76
    ACC = 132
    AF = 164
    k(f"s_sub_u32 s{S_ID}, s2, {N_A}")
    div7(k, S_JB, S_PB, S_ID)
    wave_lane(k, S_W, lane, t0)
    pre_common(k, S_JB, S_W, S_Q, S_L, lane, l16, va, t0, t1, t2)
    k(f"""s_lshl_b32 s{S_PT}, s{S_PB}, 2
    s_add_u32 s{S_PT}, s{S_PT}, s{S_W}
    s_lshl_b32 s13, s{S_PT}, 4
    v_and_b32 v{t0}, 15, v{lane}
    v_add_u32 v{vp}, s13, v{t0}            ; p
    v_lshrrev_b32 v{t1}, 4, v{lane}
    v_mul_u32_u24 v{vb}, 896, v{vp}
    v_lshl_add_u32 v{vb}, v{t1}, 4, v{vb}
    v_lshlrev_b32 v{vp}, 1, v{vp}
    s_waitcnt lgkmcnt(0)""")
    srd(k, 56, 28, 448 * 896); srd(k, 60, 30, 448 * 896); srd(k, 48, 44, WS_BYTES)
    k(f"""global_load_ushort v{lre}, v{vp}, s[24:25]
    global_load_ushort v{lim}, v{vp}, s[26:27]
    global_load_ushort v{ldt}, v{vp}, s[36:37]""")
    for i in range(14):
        k(f"buffer_load_dwordx4 {v(BR+4*i,4)}, v{vb}, s[56:59], 0 offen offset:{64*i}")
        k(f"buffer_load_dwordx4 {v(BI+4*i,4)}, v{vb}, s[60:63], 0 offen offset:{64*i}")
    k("s_waitcnt vmcnt(28)")
    emit_lam(k, lre, lim, ldt, lr, li, t0, t1)
    k(f"""v_add_f32 v{lr}, -1.0, v{lr}
    v_mul_f32 v{t0}, v{lre}, v{lre}
    v_fmac_f32 v{t0}, v{lim}, v{lim}
    v_rcp_f32 v{t0}, v{t0}
    v_mul_f32 v{cr}, v{lr}, v{lre}
    v_add_f32 v{t0}, v{t0}, v{t0}
    v_fmac_f32 v{cr}, v{li}, v{lim}
    v_mul_f32 v{ci}, v{li}, v{lre}
    v_fma_f32 v{ci}, -v{lr}, v{lim}, v{ci}
    v_mul_f32 v{cr}, v{cr}, v{t0}
    v_mul_f32 v{ci}, v{ci}, v{t0}
    v_mov_b32 v{msk}, 1.0
    v_cmp_gt_u32 vcc, 16, v{lane}
    s_cmp_eq_u32 s{S_JB}, 0
    s_cselect_b64 vcc, vcc, 0
    v_cndmask_b32 v{msk}, v{msk}, 0, vcc""")
    k("s_waitcnt vmcnt(0)\ns_barrier")
    lda_perm(k, va, 0, AF)
    for ks in range(14):
        if ks + 1 < 14:
            lda_perm(k, va, ks + 1, AF + 16 * ((ks + 1) & 1)); k("s_waitcnt lgkmcnt(4)")
        else: k("s_waitcnt lgkmcnt(0)")
        for tl in range(4):
            for part in range(2):
                d = ACC + 8 * tl + 4 * part
                c = "0" if ks == 0 else v(d, 4)
                k(f"v_mfma_f32_16x16x32_bf16 {v(d,4)}, {v(AF+16*(ks&1)+4*tl,4)}, {v((BR,BI)[part]+4*ks,4)}, {c}")
    k(f"""s_mul_i32 s13, s{S_PT}, 28
    s_lshl_b32 s14, s{S_JB}, 1
    s_add_u32 s13, s13, s14
    s_lshl_b32 s13, s13, 10
    s_add_u32 s13, s13, {WBB}
    s_add_u32 s14, s13, {14*1024}""")
    O = 20
    k(f"v_mul_f32 v{ACC}, v{ACC}, v{msk}\nv_mul_f32 v{ACC+4}, v{ACC+4}, v{msk}")
    for K in range(2):
        for mt in range(2):
            d = ACC + 8 * (2 * K + mt)
            for i in range(4):
                k(f"""v_mul_f32 v{O+i}, v{d+i}, v{cr}
                v_fma_f32 v{O+i}, -v{d+4+i}, v{ci}, v{O+i}
                v_mul_f32 v{O+4+i}, v{d+i}, v{ci}
                v_fmac_f32 v{O+4+i}, v{d+4+i}, v{cr}""")
            P = 32 + 8 * K
            k(f"""v_cvt_pk_bf16_f32 v{P+2*mt}, v{O}, v{O+1}
            v_cvt_pk_bf16_f32 v{P+2*mt+1}, v{O+2}, v{O+3}
            v_cvt_pk_bf16_f32 v{P+4+2*mt}, v{O+4}, v{O+5}
            v_cvt_pk_bf16_f32 v{P+4+2*mt+1}, v{O+6}, v{O+7}""")
        k(f"""buffer_store_dwordx4 {v(32+8*K,4)}, v{l16}, s[48:51], s13 offen offset:{1024*K}
        buffer_store_dwordx4 {v(36+8*K,4)}, v{l16}, s[48:51], s14 offen offset:{1024*K}""")
    k("s_endpgm")

def job_d(k):
    S_ID, S_JB, S_OB, S_W, S_Q, S_L, S_JT = 4, 5, 6, 7, 8, 9, 12
    lane, l16, va, t0, t1, t2, vd, msk = 1, 2, 3, 4, 5, 6, 7, 8
    QF, DF = 20, 76
    ACC = 132
    AF = 164
    T = 200
    k(f"s_sub_u32 s{S_ID}, s2, {N_A+N_B}")
    div7(k, S_JB, S_OB, S_ID)
    wave_lane(k, S_W, lane, t0)
    pre_common(k, S_JB, S_W, S_Q, S_L, lane, l16, va, t0, t1, t2)
    k(f"""s_lshl_b32 s{S_JT}, s{S_OB}, 2
    s_add_u32 s{S_JT}, s{S_JT}, s{S_W}
    s_mul_i32 s13, s{S_JT}, 14336
    v_and_b32 v{vd}, 0x30, v{lane}       ; 16*g bytes
    s_waitcnt lgkmcnt(0)""")
    srd(k, 56, 38, 896); srd(k, 48, 44, WS_BYTES)
    for i in range(14):
        if i and i % 4 == 0: k("s_add_u32 s13, s13, 4096")
        k(f"buffer_load_dwordx4 {v(QF+4*i,4)}, v{l16}, s[52:55], s13 offen offset:{1024*(i%4)}")
        k(f"buffer_load_dwordx4 {v(DF+4*i,4)}, v{vd}, s[56:59], 0 offen offset:{64*i}")
    k(f"""v_mov_b32 v{msk}, 1.0
    v_cmp_gt_u32 vcc, 16, v{lane}
    s_cmp_eq_u32 s{S_JB}, 0
    s_cselect_b64 vcc, vcc, 0
    v_cndmask_b32 v{msk}, v{msk}, 0, vcc""")
    for i in range(14):
        k(f"s_waitcnt vmcnt({2*(13-i)})")
        for r in range(4):
            q, d = QF + 4 * i + r, DF + 4 * i + r
            k(f"""v_lshlrev_b32 v{T}, 16, v{q}
            v_lshlrev_b32 v{T+1}, 16, v{d}
            v_and_b32 v{q}, 0xffff0000, v{q}
            v_and_b32 v{d}, 0xffff0000, v{d}
            v_mul_f32 v{T}, v{T}, v{T+1}
            v_mul_f32 v{q}, v{q}, v{d}
            v_cvt_pk_bf16_f32 v{q}, v{T}, v{q}""")
    k("s_barrier")
    lda_perm(k, va, 0, AF)
    for ks in range(14):
        if ks + 1 < 14:
            lda_perm(k, va, ks + 1, AF + 16 * ((ks + 1) & 1)); k("s_waitcnt lgkmcnt(4)")
        else: k("s_waitcnt lgkmcnt(0)")
        for tl in range(4):
            d = ACC + 4 * tl
            c = "0" if ks == 0 else v(d, 4)
            k(f"v_mfma_f32_16x16x32_bf16 {v(d,4)}, {v(AF+16*(ks&1)+4*tl,4)}, {v(QF+4*ks,4)}, {c}")
    k(f"""s_mul_i32 s13, s{S_JT}, 14
    s_lshl_b32 s14, s{S_JB}, 1
    s_add_u32 s13, s13, s14
    s_lshl_b32 s13, s13, 10
    s_add_u32 s13, s13, {WBD}
    v_mul_f32 v{ACC}, v{ACC}, v{msk}""")
    for K in range(2):
        for mt in range(2):
            d = ACC + 4 * (2 * K + mt)
            k(f"""v_cvt_pk_bf16_f32 v{20+4*K+2*mt}, v{d}, v{d+1}
            v_cvt_pk_bf16_f32 v{20+4*K+2*mt+1}, v{d+2}, v{d+3}""")
        k(f"buffer_store_dwordx4 {v(20+4*K,4)}, v{l16}, s[48:51], s13 offen offset:{1024*K}")
    k("s_endpgm")

def job_c(k):
    S_ID, S_PART, S_PB, S_OB, S_W, S_JT, S_G = 4, 5, 6, 8, 7, 12, 9
    lane, l16, va, va2, t0, t1, t2, vg = 1, 2, 3, 9, 4, 5, 6, 7
    QF = 20
    ACC = 132
    AF = 164
    k(f"""s_sub_u32 s{S_ID}, s2, {N_A+N_B+N_D}
    s_cmp_ge_u32 s{S_ID}, 49
    s_cselect_b32 s{S_PART}, 1, 0
    s_mul_i32 s13, s{S_PART}, 49
    s_sub_u32 s{S_ID}, s{S_ID}, s13""")
    div7(k, S_PB, S_OB, S_ID)
    wave_lane(k, S_W, lane, t0)
    table_ptr(k, 10, "tab_qj")
    srd(k, 52, 10, 28 * 14336)
    k(f"""v_lshlrev_b32 v{l16}, 4, v{lane}
    v_lshrrev_b32 v{t0}, 3, v{lane}
    v_mul_u32_u24 v{vg}, 896, v{t0}
    v_bfe_u32 v{t0}, v{lane}, 4, 1
    v_lshlrev_b32 v{t0}, 2, v{t0}
    v_and_b32 v{t1}, 7, v{lane}
    v_xor_b32 v{t0}, v{t0}, v{t1}
    v_lshl_add_u32 v{vg}, v{t0}, 4, v{vg}
    s_lshl_b32 s{S_JT}, s{S_OB}, 2
    s_add_u32 s{S_JT}, s{S_JT}, s{S_W}
    s_mul_i32 s13, s{S_JT}, 14336
    s_lshl_b32 s{S_G}, s{S_PB}, 7
    s_mul_i32 s14, s{S_W}, {8*896}
    s_add_u32 s{S_G}, s{S_G}, s14
    s_lshl_b32 s14, s{S_W}, 10
    s_mov_b32 m0, s14
    s_waitcnt lgkmcnt(0)
    s_cmp_eq_u32 s{S_PART}, 0
    s_cselect_b32 s14, s32, s34
    s_cselect_b32 s15, s33, s35""")
    srd(k, 56, 14, 448 * 896); srd(k, 48, 44, WS_BYTES)
    for i in range(14):
        if i: k(f"s_add_u32 s{S_G}, s{S_G}, {32*896}\ns_add_u32 m0, m0, 4096")
        k(f"buffer_load_dwordx4 v{vg}, s[56:59], s{S_G} offen lds")
        if i and i % 4 == 0: k("s_add_u32 s13, s13, 4096")
        k(f"buffer_load_dwordx4 {v(QF+4*i,4)}, v{l16}, s[52:55], s13 offen offset:{1024*(i%4)}")
    k(f"""v_lshrrev_b32 v{t0}, 4, v{lane}
    v_bfe_u32 v{t1}, v{lane}, 2, 2
    v_lshl_add_u32 v{t0}, v{t0}, 3, v{t1}
    v_lshlrev_b32 v{va}, 7, v{t0}
    v_and_b32 v{t0}, 3, v{lane}
    v_lshl_add_u32 v{va}, v{t0}, 4, v{va}
    v_bfe_u32 v{t0}, v{lane}, 3, 1
    v_lshl_add_u32 v{va}, v{t0}, 6, v{va}      ; K=0 address
    v_xor_b32 v{va2}, 64, v{va}                ; K=1 address""")
    def lda(ks, base):
        for K in range(2):
            for mt in range(2):
                for u in range(2):
                    k(f"ds_read_b64_tr_b16 {v(base+8*K+4*mt+2*u,2)}, v{(va,va2)[K]} offset:{ks*4096+u*512+8*mt}")
    k("s_waitcnt vmcnt(0)\ns_barrier")
    lda(0, AF)
    for ks in range(14):
        if ks + 1 < 14:
            lda(ks + 1, AF + 16 * ((ks + 1) & 1)); k("s_waitcnt lgkmcnt(8)")
        else: k("s_waitcnt lgkmcnt(0)")
        for tl in range(4):
            d = ACC + 4 * tl
            c = "0" if ks == 0 else v(d, 4)
            k(f"v_mfma_f32_16x16x32_bf16 {v(d,4)}, {v(AF+16*(ks&1)+4*tl,4)}, {v(QF+4*ks,4)}, {c}")
    k(f"""s_lshl_b32 s13, s{S_OB}, 1
    s_lshr_b32 s14, s{S_W}, 1
    s_add_u32 s13, s13, s14
    s_mul_i32 s13, s13, 56
    s_mul_i32 s14, s{S_PART}, 28
    s_add_u32 s13, s13, s14
    s_lshl_b32 s14, s{S_PB}, 2
    s_add_u32 s13, s13, s14
    s_lshl_b32 s13, s13, 10
    s_and_b32 s14, s{S_W}, 1
    s_lshl_b32 s14, s14, 8
    s_add_u32 s13, s13, s14
    s_add_u32 s13, s13, {WC}
    v_and_b32 v{t0}, 15, v{lane}
    v_lshlrev_b32 v{t0}, 4, v{t0}
    v_bfe_u32 v{t1}, v{lane}, 4, 1
    v_lshl_add_u32 v{t0}, v{t1}, 9, v{t0}
    v_lshrrev_b32 v{t1}, 5, v{lane}
    v_lshl_add_u32 v{t0}, v{t1}, 10, v{t0}""")
    for K in range(2):
        for mt in range(2):
            d = ACC + 4 * (2 * K + mt)
            k(f"""v_cvt_pk_bf16_f32 v{20+4*K+2*mt}, v{d}, v{d+1}
            v_cvt_pk_bf16_f32 v{20+4*K+2*mt+1}, v{d+2}, v{d+3}""")
        k(f"buffer_store_dwordx4 {v(20+4*K,4)}, v{t0}, s[48:51], s13 offen offset:{2048*K}")
    k("s_endpgm")

def job_w(k):
    S_R, S_W, S_G = 4, 7, 9
    lane, l16, t0, t1, va, vo = 1, 2, 4, 5, 3, 6
    O = 20
    IMOFF = 15360
    k(f"s_sub_u32 s{S_R}, s2, {N_A+N_B+N_D+N_C}")
    wave_lane(k, S_W, lane, t0)
    k(f"""v_lshlrev_b32 v{l16}, 4, v{lane}
    s_mul_i32 s{S_G}, s{S_R}, 14400
    s_and_b32 s13, s{S_W}, 1
    s_lshl_b32 s13, s13, 13           ; (w&1)*8192
    s_add_u32 s{S_G}, s{S_G}, s13
    s_lshr_b32 s14, s{S_W}, 1
    s_mul_i32 s15, s14, {IMOFF}
    s_add_u32 s13, s13, s15
    s_mov_b32 m0, s13
    s_waitcnt lgkmcnt(0)
    s_cmp_eq_u32 s14, 0
    s_cselect_b32 s14, s18, s20
    s_cselect_b32 s15, s19, s21""")
    srd(k, 56, 14, 2048 * 450); srd(k, 48, 44, WS_BYTES)
    for i in range(7):
        if i == 4: k(f"s_add_u32 s{S_G}, s{S_G}, 4096\ns_add_u32 m0, m0, 4096")
        k(f"buffer_load_dwordx4 v{l16}, s[56:59], s{S_G} offen offset:{1024*(i%4)} lds")
    sk = k.label("w7")
    k(f"""s_bitcmp1_b32 s{S_W}, 0
    s_cbranch_scc1 {sk}
    buffer_load_dwordx4 v{l16}, s[56:59], s{S_G} offen offset:3072 lds
    {sk}:""")
    k(f"""v_and_b32 v{t0}, 7, v{lane}
    v_mul_u32_u24 v{va}, 1800, v{t0}
    v_lshrrev_b32 v{t1}, 3, v{lane}
    s_mul_i32 s13, s{S_W}, 56
    v_add_u32 v{t1}, s13, v{t1}          ; u for i=0
    v_lshlrev_b32 v{vo}, 13, v{t1}
    v_lshl_add_u32 v{vo}, v{t0}, 4, v{vo}
    v_lshl_add_u32 v{va}, v{t1}, 1, v{va}
    v_mov_b32 v{t0}, v{va}
    v_cmp_eq_u32 vcc, 0, v{t1}
    v_add_u32 v{t1}, 448, v{va}
    v_cndmask_b32 v{t0}, v{t0}, v{t1}, vcc
    s_lshl_b32 s13, s{S_R}, 7
    s_add_u32 s13, s13, {WT}
    s_waitcnt vmcnt(0)
    s_barrier""")
    H = 60
    def fin(i):
        for e in range(4):
            k(f"v_lshl_or_b32 v{O+4*i+e}, v{H+4*i+e}, 16, v{O+4*i+e}")
        k(f"buffer_store_dwordx4 {v(O+4*i,4)}, v{vo}, s[48:51], s13 offen")
        if i < 6: k("s_add_u32 s13, s13, 0x10000")
    for i in range(7):
        ad = t0 if i == 0 else va
        for e in range(4):
            k(f"""ds_read_u16 v{O+4*i+e}, v{ad} offset:{e*450+16*i}
            ds_read_u16 v{H+4*i+e}, v{ad} offset:{IMOFF+e*450+16*i}""")
        if i >= 1:
            k(f"s_waitcnt lgkmcnt(8)"); fin(i - 1)
    k(f"s_waitcnt lgkmcnt(0)"); fin(6)
    k("s_endpgm")

def build_k1():
    k = Kernel("k1")
    prologue_ptrs(k)
    lb, ld, lc, lw, lx = (k.label(x) for x in "bdcwx")
    k(f"""s_cmp_ge_u32 s2, {N_A}
    s_cbranch_scc1 {lb}""")
    job_a(k)
    k(f"{lb}:\ns_cmp_ge_u32 s2, {N_A+N_B}\ns_cbranch_scc1 {ld}")
    job_b(k)
    k(f"{ld}:\ns_cmp_ge_u32 s2, {N_A+N_B+N_D}\ns_cbranch_scc1 {lc}")
    job_d(k)
    k(f"{lc}:\ns_cmp_ge_u32 s2, {N_A+N_B+N_D+N_C}\ns_cbranch_scc1 {lw}")
    job_c(k)
    k(f"{lw}:\ns_cmp_ge_u32 s2, {K1_GRID}\ns_cbranch_scc1 {lx}")
    job_w(k)
    k(f"{lx}:\ns_endpgm")
    return k, dict(grid=K1_GRID, lds=K1_LDS, nv=208, na=0, ns=72)
```

```python
from common import *
from k1 import wave_lane

K2_LDS = 8192 + 2 * 32 * 144
N_R = 28

def fft_table():
    lane = np.arange(64); n = lane & 15; g = lane >> 4
    def pack8(vals):
        b = np.array([[bf16bits(x) for x in row] for row in vals], np.uint32)
        return b[:, 0::2] | (b[:, 1::2] << 16)
    blocks = []
    for w in range(4):
        for ks in range(2):
            a_ = (16*w + n)[:, None]; b_ = (32*ks + 8*g)[:, None] + np.arange(8)[None, :]
            ang = 2*np.pi*((a_*b_) % 64)/64
            blocks.append(pack8(np.cos(ang))); blocks.append(pack8(np.sin(ang)))
        k1 = (16*w + n)[:, None]; n2 = (8*g)[:, None] + np.arange(8)[None, :]
        ang = 2*np.pi*(k1*n2)/2048
        t = np.concatenate([np.cos(ang), -np.sin(ang)], 1).astype(np.float32).view(np.uint32)
        for j in range(4): blocks.append(t[:, 4*j:4*j+4])
        tr = np.zeros((64, 8)); ti = np.zeros((64, 8))
        for nt in range(2):
            for i in range(4):
                n2 = 8*(n >> 2) + 4*nt + (n & 3); k1 = 16*w + 4*g + i
                ang = 2*np.pi*(k1*n2)/2048
                tr[:, 4*nt+i] = np.cos(ang)/2048; ti[:, 4*nt+i] = np.sin(ang)/2048
        t = np.concatenate([tr, ti], 1).astype(np.float32).view(np.uint32)
        for j in range(4): blocks.append(t[:, 4*j:4*j+4])
    for t_ in range(2):
        a_ = (8*(n >> 2) + 4*t_ + (n & 3))[:, None]; b_ = (8*g)[:, None] + np.arange(8)[None, :]
        ang = 2*np.pi*((a_*b_) % 32)/32
        blocks.append(pack8(np.cos(ang))); blocks.append(pack8(np.sin(ang)))
    d = np.concatenate([b.reshape(-1) for b in blocks]).astype(np.uint64)
    q = d[0::2] | (d[1::2] << np.uint64(32))
    L = [".p2align 8", ".type tab_fft,@object", "tab_fft:"]
    for i in range(0, len(q), 8):
        L.append(".quad " + ",".join("0x%x" % int(x) for x in q[i:i+8]))
    return "\n".join(L)

def cmul(k, orr, oi, dr, di, tr, ti):
    k(f"""v_mul_f32 v{orr}, v{dr}, v{tr}
    v_mul_f32 v{oi}, v{dr}, v{ti}
    v_fma_f32 v{orr}, -v{di}, v{ti}, v{orr}
    v_fmac_f32 v{oi}, v{di}, v{tr}""")

def conv_body(k):
    S_W, S_RE, S_IM, S_SM = 7, 8, 9, 12
    lane, l16, t0, t1, vx, vw, vq, vtr = 1, 2, 3, 4, 5, 6, 7, 8
    XR, XI = 12, 16
    SQ = 20
    WW = 28
    C64, S64, N64 = 36, 44, 52
    TF = 60
    TI = 76
    C32, S32, N32 = 92, 100, 108
    FR, FI = 116, 124
    AF = 132
    DR, DI = 164, 172
    T = 180
    PR, PI = 196, 200
    wave_lane(k, S_W, lane, t0)
    table_ptr(k, 10, "tab_fft")
    srd(k, 52, 10, 52 * 1024)
    k(f"""v_lshlrev_b32 v{l16}, 4, v{lane}
    s_mul_i32 s13, s{S_W}, {12*1024}
    s_add_u32 s14, s13, 4096
    s_add_u32 s15, s13, 8192
    s_lshl_b32 s{S_RE}, s2, 1
    s_add_u32 s{S_IM}, s{S_RE}, 1
    s_cmp_eq_u32 s2, 0
    s_cselect_b32 s{S_RE}, 1, s{S_RE}
    s_cselect_b32 s{S_IM}, 0, s{S_IM}
    s_cselect_b32 s{S_SM}, 0, 1.0
    s_lshl_b32 s{S_RE}, s{S_RE}, 12
    s_lshl_b32 s{S_IM}, s{S_IM}, 12
    v_and_b32 v{t0}, 15, v{lane}
    v_lshrrev_b32 v{t1}, 4, v{lane}
    s_lshl_b32 s18, s{S_W}, 4
    v_add_u32 v{t0}, s18, v{t0}            ; n1 = 16w+n
    v_lshlrev_b32 v{vx}, 6, v{t0}
    v_lshl_add_u32 v{vx}, v{t1}, 4, v{vx}
    v_lshlrev_b32 v{vq}, 1, v{vx}
    v_lshlrev_b32 v{vw}, 2, v{t0}
    v_lshl_add_u32 v{vw}, v{t1}, 11, v{vw}
    s_lshl_b32 s18, s2, 13
    s_add_u32 s18, s18, {WT}
    s_add_u32 s16, s4, s{S_RE}
    s_add_u32 s17, s4, s{S_IM}
    s_waitcnt lgkmcnt(0)""")
    k.mark(0)
    srd(k, 48, 44, WS_BYTES)
    k(f"""buffer_load_dwordx4 {v(XR,4)}, v{vx}, s[48:51], s16 offen
    buffer_load_dwordx4 {v(XI,4)}, v{vx}, s[48:51], s17 offen
    buffer_load_dwordx4 {v(SQ,4)}, v{vq}, s[48:51], s5 offen
    buffer_load_dwordx4 {v(SQ+4,4)}, v{vq}, s[48:51], s5 offen offset:16""")
    for ks in range(2):
        k(f"buffer_load_dwordx4 {v(C64+4*ks,4)}, v{l16}, s[52:55], s13 offen offset:{2048*ks}")
        k(f"buffer_load_dwordx4 {v(S64+4*ks,4)}, v{l16}, s[52:55], s13 offen offset:{2048*ks+1024}")
    for j in range(4): k(f"buffer_load_dwordx4 {v(TF+4*j,4)}, v{l16}, s[52:55], s14 offen offset:{1024*j}")
    k("s_mov_b32 s13, 0xc000")
    for t_ in range(2):
        k(f"buffer_load_dwordx4 {v(C32+4*t_,4)}, v{l16}, s[52:55], s13 offen offset:{2048*t_}")
        k(f"buffer_load_dwordx4 {v(S32+4*t_,4)}, v{l16}, s[52:55], s13 offen offset:{2048*t_+1024}")
    for e in range(8): k(f"buffer_load_dword v{WW+e}, v{vw}, s[48:51], s18 offen offset:{256*e}")
    for j in range(4): k(f"buffer_load_dwordx4 {v(TI+4*j,4)}, v{l16}, s[52:55], s15 offen offset:{1024*j}")
    k(f"""v_lshrrev_b32 v{t0}, 4, v{lane}
    v_bfe_u32 v{t1}, v{lane}, 2, 2
    v_lshl_add_u32 v{t0}, v{t0}, 3, v{t1}
    v_lshlrev_b32 v{vtr}, 6, v{t0}
    v_and_b32 v{t0}, 3, v{lane}
    v_lshl_add_u32 v{vtr}, v{t0}, 4, v{vtr}
    v_mov_b32 v{t1}, {fhex(1e-5)}
    s_mov_b32 s19, {fhex(1/448)}
    s_waitcnt vmcnt(24)""")
    k.mark(1)
    for e in range(8):
        k(f"v_fma_f32 v{SQ+e}, v{SQ+e}, s19, v{t1}")
    for e in range(8):
        k(f"v_rsq_f32 v{SQ+e}, v{SQ+e}")
    for j in range(4):
        k(f"""v_lshlrev_b32 v{FR+2*j}, 16, v{XR+j}
        v_and_b32 v{FR+2*j+1}, 0xffff0000, v{XR+j}
        v_lshlrev_b32 v{FI+2*j}, 16, v{XI+j}
        v_and_b32 v{FI+2*j+1}, 0xffff0000, v{XI+j}""")
    for e in range(8):
        k(f"""v_mul_f32 v{T+e}, v{FR+e}, v{SQ+e}
        v_mul_f32 v{SQ+e}, s{S_SM}, v{SQ+e}""")
    for j in range(4): k(f"v_cvt_pk_bf16_f32 v{PR+j}, v{T+2*j}, v{T+2*j+1}")
    k(f"ds_write_b128 v{vx}, {v(PR,4)}")
    for e in range(8): k(f"v_mul_f32 v{T+8+e}, v{FI+e}, v{SQ+e}")
    for j in range(4): k(f"v_cvt_pk_bf16_f32 v{PI+j}, v{T+8+2*j}, v{T+8+2*j+1}")
    k(f"ds_write_b128 v{vx}, {v(PI,4)} offset:4096")
    k("s_waitcnt vmcnt(20)")
    for j in range(8): k(f"v_xor_b32 v{N64+j}, 0x80008000, v{S64+j}")
    k("s_waitcnt lgkmcnt(0)\ns_barrier")
    k.mark(2)
    for ks in range(2):
        for mt in range(2):
            for pl in range(2):
                for u in range(2):
                    k(f"ds_read_b64_tr_b16 {v(AF+16*pl+8*mt+4*ks+2*u,2)}, v{vtr} offset:{4096*pl+2048*ks+256*u+8*mt}")
    def A(pl, mt, ks): return v(AF+16*pl+8*mt+4*ks, 4)
    mf = "v_mfma_f32_16x16x32_bf16"
    for ks in range(2):
        k(f"s_waitcnt lgkmcnt({8*(1-ks)})")
        for mt in range(2):
            k(f"{mf} {v(DR+4*mt,4)}, {A(0,mt,ks)}, {v(C64+4*ks,4)}, {'0' if ks==0 else v(DR+4*mt,4)}")
            k(f"{mf} {v(DI+4*mt,4)}, {A(1,mt,ks)}, {v(C64+4*ks,4)}, {'0' if ks==0 else v(DI+4*mt,4)}")
        for mt in range(2):
            k(f"{mf} {v(DR+4*mt,4)}, {A(1,mt,ks)}, {v(S64+4*ks,4)}, {v(DR+4*mt,4)}")
            k(f"{mf} {v(DI+4*mt,4)}, {A(0,mt,ks)}, {v(N64+4*ks,4)}, {v(DI+4*mt,4)}")
    k("s_waitcnt vmcnt(12)")
    for j in range(8): k(f"v_xor_b32 v{N32+j}, 0x80008000, v{S32+j}")
    k.mark(3)
    for e in range(8): cmul(k, T+e, T+8+e, DR+e, DI+e, TF+e, TF+8+e)
    for j in range(4):
        k(f"v_cvt_pk_bf16_f32 v{PR+j}, v{T+2*j}, v{T+2*j+1}\nv_cvt_pk_bf16_f32 v{PI+j}, v{T+8+2*j}, v{T+8+2*j+1}")
    for mt in range(2):
        k(f"{mf} {v(DR+4*mt,4)}, {v(C32+4*mt,4)}, {v(PR,4)}, 0")
        k(f"{mf} {v(DI+4*mt,4)}, {v(C32+4*mt,4)}, {v(PI,4)}, 0")
    for mt in range(2):
        k(f"{mf} {v(DR+4*mt,4)}, {v(S32+4*mt,4)}, {v(PI,4)}, {v(DR+4*mt,4)}")
        k(f"{mf} {v(DI+4*mt,4)}, {v(N32+4*mt,4)}, {v(PR,4)}, {v(DI+4*mt,4)}")
    k("s_waitcnt vmcnt(4)")
    for e in range(8):
        k(f"v_lshlrev_b32 v{TF+e}, 16, v{WW+e}\nv_and_b32 v{TF+8+e}, 0xffff0000, v{WW+e}")
    for e in range(8): cmul(k, T+e, T+8+e, DR+e, DI+e, TF+e, TF+8+e)
    for j in range(4):
        k(f"v_cvt_pk_bf16_f32 v{PR+j}, v{T+2*j}, v{T+2*j+1}\nv_cvt_pk_bf16_f32 v{PI+j}, v{T+8+2*j}, v{T+8+2*j+1}")
    for nt in range(2):
        k(f"{mf} {v(DR+4*nt,4)}, {v(PR,4)}, {v(C32+4*nt,4)}, 0")
        k(f"{mf} {v(DI+4*nt,4)}, {v(PI,4)}, {v(C32+4*nt,4)}, 0")
    for nt in range(2):
        k(f"{mf} {v(DR+4*nt,4)}, {v(PI,4)}, {v(N32+4*nt,4)}, {v(DR+4*nt,4)}")
        k(f"{mf} {v(DI+4*nt,4)}, {v(PR,4)}, {v(S32+4*nt,4)}, {v(DI+4*nt,4)}")
    vw2, vr2 = vw, vq
    k(f"""v_bfe_u32 v{t0}, v{lane}, 2, 2
    v_and_b32 v{t1}, 3, v{lane}
    v_lshl_add_u32 v{t0}, v{t0}, 3, v{t1}
    v_mul_u32_u24 v{t0}, 144, v{t0}
    v_lshrrev_b32 v{t1}, 4, v{lane}
    v_lshl_add_u32 v{vr2}, v{t1}, 4, v{t0}
    v_lshl_add_u32 v{vw2}, v{t1}, 3, v{t0}
    s_lshl_b32 s13, s{S_W}, 5
    v_add_u32 v{vw2}, s13, v{vw2}
    s_waitcnt vmcnt(0)""")
    k.mark(4)
    IM2 = 32 * 144
    for e in range(8): cmul(k, T+e, T+8+e, DR+e, DI+e, TI+e, TI+8+e)
    for j in range(4):
        k(f"v_cvt_pk_bf16_f32 v{PR+j}, v{T+2*j}, v{T+2*j+1}\nv_cvt_pk_bf16_f32 v{PI+j}, v{T+8+2*j}, v{T+8+2*j+1}")
    for nt in range(2):
        k(f"ds_write_b64 v{vw2}, {v(PR+2*nt,2)} offset:{8192+nt*4*144}")
        k(f"ds_write_b64 v{vw2}, {v(PI+2*nt,2)} offset:{8192+IM2+nt*4*144}")
    k("s_waitcnt lgkmcnt(0)\ns_barrier")
    for ks in range(2):
        for mt in range(2):
            for pl in range(2):
                k(f"ds_read_b128 {A(pl,mt,ks)}, v{vr2} offset:{8192+IM2*pl+mt*4*144+64*ks}")
    for ks in range(2):
        k(f"s_waitcnt lgkmcnt({4*(1-ks)})")
        for mt in range(2):
            k(f"{mf} {v(DR+4*mt,4)}, {A(0,mt,ks)}, {v(C64+4*ks,4)}, {'0' if ks==0 else v(DR+4*mt,4)}")
            k(f"{mf} {v(DI+4*mt,4)}, {A(1,mt,ks)}, {v(C64+4*ks,4)}, {'0' if ks==0 else v(DI+4*mt,4)}")
        for mt in range(2):
            k(f"{mf} {v(DR+4*mt,4)}, {A(1,mt,ks)}, {v(N64+4*ks,4)}, {v(DR+4*mt,4)}")
            k(f"{mf} {v(DI+4*mt,4)}, {A(0,mt,ks)}, {v(S64+4*ks,4)}, {v(DI+4*mt,4)}")
    k.mark(5)
    k(f"s_add_u32 s16, s6, s{S_RE}\ns_add_u32 s17, s6, s{S_IM}")
    for e in range(8): k(f"v_add_f32 v{FR+e}, v{FR+e}, v{DR+e}")
    for j in range(4): k(f"v_cvt_pk_bf16_f32 v{PR+j}, v{FR+2*j}, v{FR+2*j+1}")
    k(f"buffer_store_dwordx4 {v(PR,4)}, v{vx}, s[48:51], s16 offen")
    for e in range(8): k(f"v_fmac_f32 v{FI+e}, s{S_SM}, v{DI+e}")
    for j in range(4): k(f"v_cvt_pk_bf16_f32 v{PI+j}, v{FI+2*j}, v{FI+2*j+1}")
    k(f"buffer_store_dwordx4 {v(PI,4)}, v{vx}, s[48:51], s17 offen")
    k("s_endpgm")

def repack_job(k):
    lane, l16, t0, t1, vc = 1, 2, 3, 4, 5
    k(f"""s_load_dwordx4 s[32:35], s[0:1], 64
    s_sub_u32 s4, s2, 224""")
    wave_lane(k, 7, lane, t0)
    k(f"""v_lshlrev_b32 v{l16}, 4, v{lane}
    s_lshr_b32 s5, s4, 1           ; js*2+nh
    s_and_b32 s6, s4, 1            ; part
    s_lshl_b32 s8, s5, 5
    v_and_b32 v{t0}, 31, v{lane}
    v_add_u32 v{t0}, s8, v{t0}
    v_mul_u32_u24 v{vc}, 896, v{t0}
    v_lshrrev_b32 v{t1}, 5, v{lane}
    v_lshl_add_u32 v{vc}, v{t1}, 4, v{vc}
    s_mul_i32 s8, s7, {7*32}
    s_mul_i32 s9, s4, 28
    s_mul_i32 s12, s7, 7
    s_add_u32 s9, s9, s12
    s_lshl_b32 s9, s9, 10
    s_add_u32 s9, s9, {WC7}
    s_waitcnt lgkmcnt(0)
    s_cmp_eq_u32 s6, 0
    s_cselect_b32 s14, s32, s34
    s_cselect_b32 s15, s33, s35""")
    srd(k, 56, 14, 448 * 896); srd(k, 48, 44, WS_BYTES)
    for i in range(7): k(f"buffer_load_dwordx4 {v(8+4*i,4)}, v{vc}, s[56:59], s8 offen offset:{32*i}")
    for i in range(7):
        if i == 4: k("s_add_u32 s9, s9, 4096")
        k(f"s_waitcnt vmcnt(6)\nbuffer_store_dwordx4 {v(8+4*i,4)}, v{l16}, s[48:51], s9 offen offset:{1024*(i%4)}")
    k("s_endpgm")

def build_k2():
    k = Kernel("k2")
    lr, lx = k.label("r"), k.label("x")
    k(f"""s_load_dwordx2 s[44:45], s[0:1], 112
    s_cmp_ge_u32 s2, 224
    s_cbranch_scc1 {lr}
    s_mov_b32 s4, {X0T}
    s_mov_b32 s5, {SSQ0}
    s_mov_b32 s6, {X1T}
    L_conv_body:""")
    conv_body(k)
    k(f"{lr}:\ns_cmp_ge_u32 s2, {224+N_R}\ns_cbranch_scc1 {lx}")
    repack_job(k)
    k(f"{lx}:\ns_endpgm")
    k5 = Kernel("k5")
    k5(f"""s_load_dwordx2 s[44:45], s[0:1], 112
    s_cmp_ge_u32 s2, 224
    s_cbranch_scc1 L_k5_x
    s_mov_b32 s4, {X2T}
    s_mov_b32 s5, {SSQ2}
    s_mov_b32 s6, {X3T}
    s_branch L_conv_body
    L_k5_x:
    s_endpgm""")
    info = dict(lds=K2_LDS, nv=204, na=0, ns=64)
    return (k, dict(grid=224 + N_R, **info)), (k5, dict(grid=224, **info))
```

```python
from common import *
from k1 import wave_lane

K3_LDS = 57344 + 256
E_BYTES = 32 * 448 * 16

def cmad(k, orr, oi, ar, ai, xr, xi, br, bi):
    k(f"""v_fma_f32 v{orr}, v{ar}, v{xr}, v{br}
    v_fma_f32 v{oi}, v{ar}, v{xi}, v{bi}
    v_fma_f32 v{orr}, -v{ai}, v{xi}, v{orr}
    v_fmac_f32 v{oi}, v{ai}, v{xr}""")
def csq(k, orr, oi, ar, ai):
    k(f"""v_mul_f32 v{orr}, v{ar}, v{ar}
    v_mul_f32 v{oi}, v{ar}, v{ai}
    v_fma_f32 v{orr}, -v{ai}, v{ai}, v{orr}
    v_add_f32 v{oi}, v{oi}, v{oi}""")
def cmul(k, orr, oi, ar, ai, br, bi):
    k(f"""v_mul_f32 v{orr}, v{ar}, v{br}
    v_mul_f32 v{oi}, v{ar}, v{bi}
    v_fma_f32 v{orr}, -v{ai}, v{bi}, v{orr}
    v_fmac_f32 v{oi}, v{ai}, v{br}""")

def body(k):
    S_C, S_J, S_T, S_W, S_PT, S_G, S_WB, S_WX = 12, 13, 14, 7, 15, 68, 69, 70
    lane, l16, t0, t1, t2, vdma, va0, va1, vag, vp, vn, vq = 1, 2, 3, 4, 5, 6, 7, 8, 9, 10, 11, 12
    lre, lim, ldt, dsk = 13, 14, 15, 16
    lr, li, p16r, p16i, Lr, Li, pqr, pqi, pLr, pLi = 17, 18, 19, 20, 21, 22, 23, 24, 25, 26
    TT = 28
    AR, AI, AX, AG = 44, 60, 76, 92
    AF = 96
    RS = 136
    EO = 152
    mf = "v_mfma_f32_16x16x32_bf16"
    decode_cj(k, 2, S_C, S_J, S_T)
    wave_lane(k, S_W, lane, t0)
    table_ptr(k, 10, "tab_qd")
    k(f"""v_lshlrev_b32 v{l16}, 4, v{lane}
    v_and_b32 v{vn}, 15, v{lane}
    v_lshrrev_b32 v{vq}, 4, v{lane}
    s_lshl_b32 s{S_PT}, s{S_J}, 2
    s_add_u32 s{S_PT}, s{S_PT}, s{S_W}
    s_lshl_b32 s{S_T}, s{S_PT}, 4
    v_add_u32 v{vp}, s{S_T}, v{vn}
    v_lshlrev_b32 v{t2}, 1, v{vp}
    v_lshrrev_b32 v{t0}, 3, v{lane}
    v_lshlrev_b32 v{vdma}, 12, v{t0}
    v_and_b32 v{t0}, 1, v{vq}
    v_and_b32 v{t1}, 7, v{lane}
    v_xor_b32 v{t0}, v{t0}, v{t1}
    v_lshl_add_u32 v{vdma}, v{t0}, 4, v{vdma}
    s_lshl_b32 s{S_G}, s{S_W}, 15
    s_lshl_b32 s{S_T}, s{S_C}, 7
    s_add_u32 s{S_G}, s{S_G}, s{S_T}
    s_add_u32 s{S_G}, s{S_G}, s4
    s_lshl_b32 s{S_T}, s{S_W}, 10
    s_mov_b32 m0, s{S_T}
    s_mul_i32 s{S_WB}, s{S_PT}, {28*1024}
    s_add_u32 s{S_WB}, s{S_WB}, {WBB}
    s_mul_i32 s{S_WX}, s{S_PT}, {14*1024}
    s_waitcnt lgkmcnt(0)
    s_add_u32 s72, s44, {WBD}
    s_addc_u32 s73, s45, 0
    s_cmp_eq_u32 s9, 0
    s_cselect_b32 s10, s72, s10
    s_cselect_b32 s11, s73, s11""")
    k.mark(0)
    srd(k, 48, 44, WS_BYTES)
    srd(k, 56, 10, 28 * 14336)
    k(f"""global_load_ushort v{lre}, v{t2}, s[24:25]
    global_load_ushort v{lim}, v{t2}, s[26:27]
    global_load_ushort v{ldt}, v{t2}, s[36:37]
    global_load_ushort v{dsk}, v{t2}, s[38:39]
    s_add_u32 s71, s{S_WB}, {14*1024}""")
    for ks in range(14):
        if ks:
            k(f"s_add_u32 s{S_G}, s{S_G}, {32*4096}\ns_add_u32 m0, m0, 4096")
            if ks % 4 == 0:
                k(f"s_add_u32 s{S_WB}, s{S_WB}, 4096\ns_add_u32 s71, s71, 4096\ns_add_u32 s{S_WX}, s{S_WX}, 4096")
        o = 1024 * (ks % 4)
        k(f"""buffer_load_dwordx4 v{vdma}, s[48:51], s{S_G} offen lds
        buffer_load_dwordx4 {a(12*ks,4)}, v{l16}, s[48:51], s{S_WB} offen offset:{o}
        buffer_load_dwordx4 {a(12*ks+4,4)}, v{l16}, s[48:51], s71 offen offset:{o}
        buffer_load_dwordx4 {a(12*ks+8,4)}, v{l16}, s[56:59], s{S_WX} offen offset:{o}""")
    k(f"s_add_u32 s72, s44, s6\ns_addc_u32 s73, s45, 0")
    srd(k, 60, 72, E_BYTES)
    k(f"""v_bfe_u32 v{t1}, v{lane}, 2, 2
    v_lshl_add_u32 v{t0}, v{vq}, 3, v{t1}
    v_lshlrev_b32 v{va0}, 7, v{t0}
    v_and_b32 v{t0}, 3, v{lane}
    v_lshlrev_b32 v{t0}, 1, v{t0}
    v_bfe_u32 v{t1}, v{lane}, 3, 1
    v_xor_b32 v{t0}, v{t0}, v{t1}
    v_lshl_add_u32 v{va0}, v{t0}, 4, v{va0}
    v_xor_b32 v{va1}, 16, v{va0}
    s_lshr_b32 s{S_T}, s{S_W}, 1
    s_lshl_b32 s{S_T}, s{S_T}, 4
    v_xor_b32 v{vag}, s{S_T}, v{va0}
    s_and_b32 s{S_T}, s{S_W}, 1
    s_lshl_b32 s{S_T}, s{S_T}, 3
    v_add_u32 v{vag}, s{S_T}, v{vag}""")
    k(f"""s_sub_u32 s{S_T}, s{S_C}, 1
    s_mul_i32 s{S_T}, s{S_T}, 7168
    v_mul_u32_u24 v{t0}, {8*7168}, v{vq}
    v_lshlrev_b32 v{t1}, 4, v{vp}
    v_sub_u32 v{t1}, v{t1}, v{t0}
    v_add_u32 v{EO}, s{S_T}, v{t1}""")
    for r in range(1, 8): k(f"v_subrev_u32 v{EO+r}, 7168, v{EO+r-1}")
    k("s_waitcnt vmcnt(56)")
    emit_lam(k, lre, lim, ldt, lr, li, t0, t1)
    k(f"v_lshlrev_b32 v{dsk}, 16, v{dsk}")
    A0, A1, B0, B1 = TT, TT+1, TT+2, TT+3
    csq(k, A0, A1, lr, li); csq(k, B0, B1, A0, A1); csq(k, A0, A1, B0, B1); csq(k, p16r, p16i, A0, A1)
    csq(k, A0, A1, p16r, p16i)
    cmul(k, B0, B1, A0, A1, p16r, p16i)
    csq(k, Lr, Li, A0, A1)
    def sel4(outr, outi, r1, i1, r2, i2, r3, i3):
        k(f"""v_mov_b32 v{outr}, 1.0
        v_mov_b32 v{outi}, 0
        v_cmp_eq_u32 vcc, 1, v{vq}
        v_cndmask_b32 v{outr}, v{outr}, v{r1}, vcc
        v_cndmask_b32 v{outi}, v{outi}, v{i1}, vcc
        v_cmp_eq_u32 vcc, 2, v{vq}
        v_cndmask_b32 v{outr}, v{outr}, v{r2}, vcc
        v_cndmask_b32 v{outi}, v{outi}, v{i2}, vcc
        v_cmp_eq_u32 vcc, 3, v{vq}
        v_cndmask_b32 v{outr}, v{outr}, v{r3}, vcc
        v_cndmask_b32 v{outi}, v{outi}, v{i3}, vcc""")
    sel4(pqr, pqi, p16r, p16i, A0, A1, B0, B1)
    C0, C1 = TT+4, TT+5
    csq(k, A0, A1, Lr, Li); csq(k, B0, B1, A0, A1); csq(k, A0, A1, B0, B1)
    csq(k, B0, B1, A0, A1)
    cmul(k, C0, C1, A0, A1, B0, B1)
    sel4(pLr, pLi, A0, A1, B0, B1, C0, C1)
    k(f"""v_mov_b32 v{t2}, -1
    v_mov_b32 v{t1}, 0xffff0000
    v_cmp_gt_u32 vcc, 16, v{lane}
    v_cndmask_b32 v{t2}, v{t2}, v{t1}, vcc""")
    def lda(ks):
        b = AF + 20 * (ks & 1)
        for jt in range(4):
            for u in range(2):
                k(f"ds_read_b64_tr_b16 {v(b+4*jt+2*u,2)}, v{(va0,va1)[jt>>1]} offset:{ks*4096+u*512+8*(jt&1)}")
        for u in range(2):
            k(f"ds_read_b64_tr_b16 {v(b+16+2*u,2)}, v{vag} offset:{ks*4096+u*512}")
    starts = {0: 3, 3: 6, 6: 10, 10: 14}
    def sync_for(ks):
        e = starts[ks]
        k(f"s_waitcnt vmcnt({4*(14-e)})\ns_barrier")
    k.mark(1)
    sync_for(0); k.mark(2); lda(0)
    for ks in range(14):
        if ks + 1 < 14:
            if (ks + 1) in starts: sync_for(ks + 1)
            lda(ks + 1); k("s_waitcnt lgkmcnt(10)")
        else: k("s_waitcnt lgkmcnt(0)")
        b = AF + 20 * (ks & 1)
        for jt in range(4):
            for part, D in enumerate((AR, AI, AX)):
                k(f"{mf} {v(D+4*jt,4)}, {v(b+4*jt,4)}, {a(12*ks+4*part,4)}, {'0' if ks==0 else v(D+4*jt,4)}")
        if ks == 0:
            k(f"""v_and_b32 v{TT}, v{t2}, v{b+16}
            v_mov_b32 v{TT+1}, v{b+17}
            v_mov_b32 v{TT+2}, v{b+18}
            v_mov_b32 v{TT+3}, v{b+19}
            {mf} {v(AG,4)}, {v(b+16,4)}, {v(TT,4)}, 0""")
        else:
            k(f"{mf} {v(AG,4)}, {v(b+16,4)}, {v(b+16,4)}, {v(AG,4)}")
    k.mark(3)
    k(f"""v_and_b32 v{t0}, 3, v{lane}
    v_lshrrev_b32 v{t1}, 2, v{vn}
    v_lshl_add_u32 v{t2}, v{t1}, 4, v{t0}
    s_lshl_b32 s{S_T}, s{S_W}, 2
    v_add_u32 v{t2}, s{S_T}, v{t2}
    v_lshlrev_b32 v{t2}, 2, v{t2}           ; t*4
    v_cmp_eq_u32 s[74:75], v{t1}, v{vq}
    v_cmp_eq_u32 vcc, 1, v{t0}
    v_cndmask_b32 v{AG}, v{AG}, v{AG+1}, vcc
    v_cmp_eq_u32 vcc, 2, v{t0}
    v_cndmask_b32 v{AG}, v{AG}, v{AG+2}, vcc
    v_cmp_eq_u32 vcc, 3, v{t0}
    v_cndmask_b32 v{AG}, v{AG}, v{AG+3}, vcc
    v_mov_b32 v{t1}, {fhex(1e-5)}
    v_fmac_f32 v{t1}, {fhex(1/448)}, v{AG}
    v_rsq_f32 v{t1}, v{t1}
    s_mov_b64 exec, s[74:75]
    ds_write_b32 v{t2}, v{t1} offset:57344
    s_mov_b64 exec, -1
    v_lshlrev_b32 v{t0}, 6, v{vq}
    s_waitcnt lgkmcnt(0)
    s_barrier""")
    for j in range(4): k(f"ds_read_b128 {v(RS+4*j,4)}, v{t0} offset:{57344+16*j}")
    XB = AF
    k(f"""v_bfe_u32 v{t1}, v{vp}, 1, 1
    v_lshlrev_b32 v{t2}, 1, v{vq}
    v_xor_b32 v{t1}, v{t1}, v{t2}
    v_lshlrev_b32 v{t1}, 4, v{t1}
    v_lshl_add_u32 v{t1}, v{vp}, 7, v{t1}
    v_lshlrev_b32 v{t2}, 5, v{vq}
    s_cmp_eq_u32 s9, 0
    s_cselect_b64 vcc, -1, 0
    v_cndmask_b32 v{t1}, v{t2}, v{t1}, vcc
    v_xor_b32 v{t2}, 16, v{t1}
    ds_read_b128 {v(XB,4)}, v{t1}
    ds_read_b128 {v(XB+4,4)}, v{t2}
    v_lshlrev_b32 v{t0}, 2, v{vn}
    s_waitcnt lgkmcnt(2)""")
    for t in range(16):
        k(f"v_mul_f32 v{AR+t}, v{AR+t}, v{RS+t}\nv_mul_f32 v{AI+t}, v{AI+t}, v{RS+t}")
    cur = (AR, AI)
    for t in range(1, 16):
        nxt = (TT + 2 * (t & 1), TT + 2 * (t & 1) + 1)
        cmad(k, nxt[0], nxt[1], lr, li, cur[0], cur[1], AR + t, AI + t)
        cur = nxt
    G = AF + 8
    for q in range(4):
        k(f"ds_bpermute_b32 v{G+2*q}, v{t0}, v{cur[0]} offset:{64*q}\nds_bpermute_b32 v{G+2*q+1}, v{t0}, v{cur[1]} offset:{64*q}")
    k("s_waitcnt lgkmcnt(0)")
    P2, P3, EE = TT + 4, TT + 6, TT + 8
    cmad(k, P2, P2+1, p16r, p16i, G, G+1, G+2, G+3)
    cmad(k, P3, P3+1, p16r, p16i, P2, P2+1, G+4, G+5)
    cmad(k, EE, EE+1, p16r, p16i, P3, P3+1, G+6, G+7)
    k(f"""v_mov_b32 v{EE+2}, 1
    v_mov_b32 v{EE+3}, 1
    s_mul_i32 s{S_T}, s{S_C}, 7168
    v_lshlrev_b32 v{t1}, 4, v{vp}
    s_mov_b64 exec, 0xffff
    buffer_store_dwordx4 {v(EE,4)}, v{t1}, s[60:63], s{S_T} offen sc1
    s_mov_b64 exec, -1""")
    k.mark(4)
    PQ = TT + 12
    k(f"""v_mov_b32 v{PQ}, 0
    v_mov_b32 v{PQ+1}, 0
    v_cmp_eq_u32 vcc, 1, v{vq}
    v_cndmask_b32 v{PQ}, v{PQ}, v{G}, vcc
    v_cndmask_b32 v{PQ+1}, v{PQ+1}, v{G+1}, vcc
    v_cmp_eq_u32 vcc, 2, v{vq}
    v_cndmask_b32 v{PQ}, v{PQ}, v{P2}, vcc
    v_cndmask_b32 v{PQ+1}, v{PQ+1}, v{P2+1}, vcc
    v_cmp_eq_u32 vcc, 3, v{vq}
    v_cndmask_b32 v{PQ}, v{PQ}, v{P3}, vcc
    v_cndmask_b32 v{PQ+1}, v{PQ+1}, v{P3+1}, vcc""")
    vst = va0
    m1, mj = k.label("m1"), k.label("mj")
    U = AF + 16
    k(f"""v_lshlrev_b32 v{vst}, 12, v{vp}
    v_lshl_add_u32 v{vst}, v{vq}, 5, v{vst}
    s_lshl_b32 s{S_T}, s{S_C}, 7
    s_add_u32 s8, s8, s{S_T}
    s_add_u32 s5, s5, s{S_T}""")
    for j in range(8):
        k(f"v_lshlrev_b32 v{U+2*j}, 16, v{XB+j}\nv_and_b32 v{U+2*j+1}, 0xffff0000, v{XB+j}")
    k(f"s_cmp_lg_u32 s9, 0\ns_cbranch_scc1 {m1}")
    for t in range(16): k(f"v_fma_f32 v{AX+t}, v{AX+t}, v{RS+t}, v{U+t}")
    k(f"s_branch {mj}\n{m1}:\ns_mov_b32 s{S_T}, {fhex(-1/np.sqrt(448))}")
    for t in range(16):
        k(f"""v_fma_f32 v{U+t}, v{U+t}, s{S_T}, v{AX+t}
        v_mul_f32 v{RS+t}, v{RS+t}, v{dsk}
        v_fmac_f32 v{AX+t}, v{U+t}, v{RS+t}""")
    k(f"{mj}:")
    for j in range(8): k(f"v_cvt_pk_bf16_f32 v{XB+j}, v{AX+2*j}, v{AX+2*j+1}")
    k(f"""buffer_store_dwordx4 {v(XB,4)}, v{vst}, s[48:51], s8 offen
    buffer_store_dwordx4 {v(XB+4,4)}, v{vst}, s[48:51], s8 offen offset:16""")
    LB = AX
    def lbreg(r): return (AX + 4 * r) if r < 4 else (RS + 4 * (r - 4))
    lp, lo = k.label("poll"), k.label("pollx")
    k.mark(5)
    k(f"s_mov_b32 s74, 100000\n{lp}:")
    for r in range(8): k(f"buffer_load_dwordx4 {v(lbreg(r),4)}, v{EO+r}, s[60:63], 0 offen sc1")
    k("s_waitcnt vmcnt(0)")
    k(f"v_lshrrev_b32 v{t0}, 31, v{EO}\nv_or_b32 v{t0}, v{t0}, v{lbreg(0)+2}")
    for r in range(1, 8):
        k(f"""v_lshrrev_b32 v{t1}, 31, v{EO+r}
        v_or_b32 v{t1}, v{t1}, v{lbreg(r)+2}
        v_and_b32 v{t0}, v{t0}, v{t1}""")
    k(f"""v_cmp_ne_u32 vcc, 1, v{t0}
    s_cbranch_vccz {lo}
    s_sleep 1
    s_sub_u32 s74, s74, 1
    s_cmp_lg_u32 s74, 0
    s_cbranch_scc1 {lp}
    {lo}:""")
    k.mark(6)
    cur = (lbreg(7), lbreg(7) + 1)
    for r in range(6, -1, -1):
        nxt = (TT + 2 * (r & 1), TT + 2 * (r & 1) + 1)
        cmad(k, nxt[0], nxt[1], Lr, Li, cur[0], cur[1], lbreg(r), lbreg(r) + 1)
        cur = nxt
    CR, CI = TT + 4, TT + 5
    cmul(k, CR, CI, pLr, pLi, cur[0], cur[1])
    for op in ("v_permlane16_swap_b32", "v_permlane32_swap_b32"):
        k(f"""v_mov_b32 v{TT}, v{CR}
        v_mov_b32 v{TT+1}, v{CI}
        {op} v{CR}, v{TT}
        {op} v{CI}, v{TT+1}
        v_add_f32 v{CR}, v{CR}, v{TT}
        v_add_f32 v{CI}, v{CI}, v{TT+1}""")
    cmad(k, TT, TT+1, pqr, pqi, CR, CI, PQ, PQ+1)
    cur = (TT, TT + 1)
    for t in range(16):
        k(f"""v_fmac_f32 v{AR+t}, v{lr}, v{cur[0]}
        v_fmac_f32 v{AI+t}, v{lr}, v{cur[1]}
        v_fma_f32 v{AR+t}, -v{li}, v{cur[1]}, v{AR+t}
        v_fmac_f32 v{AI+t}, v{li}, v{cur[0]}""")
        cur = (AR + t, AI + t)
    O = AF + 16
    for j in range(8): k(f"v_cvt_pk_bf16_f32 v{O+j}, v{AR+2*j}, v{AR+2*j+1}")
    k(f"""buffer_store_dwordx4 {v(O,4)}, v{vst}, s[48:51], s5 offen
    buffer_store_dwordx4 {v(O+4,4)}, v{vst}, s[48:51], s5 offen offset:16
    s_add_u32 s5, s5, {448*4096}""")
    for j in range(8): k(f"v_cvt_pk_bf16_f32 v{O+8+j}, -v{AI+2*j}, -v{AI+2*j+1}")
    k(f"""buffer_store_dwordx4 {v(O+8,4)}, v{vst}, s[48:51], s5 offen
    buffer_store_dwordx4 {v(O+12,4)}, v{vst}, s[48:51], s5 offen offset:16
    s_endpgm""")

def entry(k, xin, ht, e, xo, mode, tail):
    k(f"""s_load_dwordx4 s[24:27], s[0:1], 32
    s_load_dwordx4 s[36:39], s[0:1], 80
    s_load_dwordx2 s[44:45], s[0:1], 112
    s_cmp_ge_u32 s2, 224
    s_cbranch_scc1 L_{k.name}_x
    s_mov_b32 s4, {xin}
    s_mov_b32 s5, {ht}
    s_mov_b32 s6, {e}
    s_mov_b32 s8, {xo}
    s_mov_b32 s9, {mode}
    {tail}""")

def build_k3():
    k = Kernel("k3")
    entry(k, X1T, HT1, E1, X1P, 0, "L_k3_body:")
    body(k)
    k("L_k3_x:\ns_endpgm")
    k6 = Kernel("k6")
    entry(k6, X3T, HT2, E2, RT, 1, "s_branch L_k3_body")
    k6("L_k6_x:\ns_endpgm")
    info = dict(grid=224, lds=K3_LDS, nv=160, na=168, ns=80)
    return (k, info), (k6, info)
```

```python
from common import *
from k1 import wave_lane

XOFF = 896 * 128
K4_LDS = XOFF + 16384

def body(k):
    S_C, S_J, S_T, S_W, S_KH, S_NH, S_G, S_WB = 12, 13, 14, 7, 15, 16, 17, 18
    lane, l16, t0, t1, t2, vdma, va0, va1, vst = 1, 2, 3, 4, 5, 6, 7, 8, 9
    XB = 12
    D0, D1 = 20, 36
    AF = 52
    T = 68
    mf = "v_mfma_f32_32x32x16_bf16"
    decode_cj(k, 2, S_C, S_J, S_T)
    wave_lane(k, S_W, lane, t0)
    k(f"""v_lshlrev_b32 v{l16}, 4, v{lane}
    s_lshr_b32 s{S_KH}, s{S_W}, 1
    s_and_b32 s{S_NH}, s{S_W}, 1
    v_lshrrev_b32 v{t0}, 3, v{lane}
    v_lshlrev_b32 v{vdma}, 12, v{t0}
    v_bfe_u32 v{t0}, v{lane}, 4, 1
    v_lshlrev_b32 v{t0}, 1, v{t0}
    v_and_b32 v{t1}, 7, v{lane}
    v_xor_b32 v{t0}, v{t0}, v{t1}
    v_lshl_add_u32 v{vdma}, v{t0}, 4, v{vdma}
    s_mul_i32 s{S_T}, s{S_KH}, 448
    s_lshl_b32 s19, s{S_NH}, 3
    s_add_u32 s{S_T}, s{S_T}, s19
    s_lshl_b32 s19, s{S_T}, 7
    s_mov_b32 m0, s19
    s_lshl_b32 s{S_G}, s{S_T}, 12
    s_lshl_b32 s19, s{S_C}, 7
    s_add_u32 s{S_G}, s{S_G}, s19
    s_add_u32 s{S_G}, s{S_G}, s4
    s_lshl_b32 s{S_WB}, s{S_J}, 1
    s_add_u32 s{S_WB}, s{S_WB}, s{S_NH}     ; js*2+nh
    s_lshl_b32 s20, s{S_WB}, 5
    s_lshl_b32 s{S_WB}, s{S_WB}, 1
    s_add_u32 s{S_WB}, s{S_WB}, s{S_KH}
    s_mul_i32 s{S_WB}, s{S_WB}, {28*1024}
    s_add_u32 s{S_WB}, s{S_WB}, s5
    v_and_b32 v{t0}, 31, v{lane}
    v_add_u32 v{t2}, s20, v{t0}             ; column
    v_lshlrev_b32 v{vst}, 12, v{t2}
    v_lshrrev_b32 v{t1}, 5, v{lane}
    v_lshl_add_u32 v{vst}, v{t1}, 6, v{vst}
    s_lshl_b32 s21, s{S_KH}, 5
    s_add_u32 s21, s21, s19                 ; (64c + 16kh)*2
    s_add_u32 s6, s6, s21
    s_add_u32 s8, s8, s21
    s_waitcnt lgkmcnt(0)""")
    k.mark(0)
    srd(k, 48, 44, WS_BYTES)
    for ks in range(28):
        if ks:
            k(f"s_add_u32 s{S_G}, s{S_G}, {16*4096}\ns_add_u32 m0, m0, 2048")
            if ks % 4 == 0: k(f"s_add_u32 s{S_WB}, s{S_WB}, 4096")
        k(f"""buffer_load_dwordx4 v{vdma}, s[48:51], s{S_G} offen lds
        buffer_load_dwordx4 {a(4*ks,4)}, v{l16}, s[48:51], s{S_WB} offen offset:{1024*(ks%4)}""")
    k(f"""buffer_load_dwordx4 {v(XB,4)}, v{vst}, s[48:51], s6 offen
    buffer_load_dwordx4 {v(XB+4,4)}, v{vst}, s[48:51], s6 offen offset:16""")
    k(f"""v_lshrrev_b32 v{t0}, 5, v{lane}
    v_bfe_u32 v{t1}, v{lane}, 2, 2
    v_lshl_add_u32 v{t0}, v{t0}, 3, v{t1}       ; 8h + r
    v_lshlrev_b32 v{va0}, 7, v{t0}
    v_and_b32 v{t0}, 1, v{lane}
    v_lshlrev_b32 v{t0}, 2, v{t0}
    v_bfe_u32 v{t1}, v{lane}, 4, 1
    v_add_u32 v{t0}, v{t0}, v{t1}
    v_bfe_u32 v{t1}, v{lane}, 3, 1
    v_lshlrev_b32 v{t1}, 1, v{t1}
    v_xor_b32 v{t0}, v{t0}, v{t1}
    v_lshl_add_u32 v{va0}, v{t0}, 4, v{va0}
    v_bfe_u32 v{t1}, v{lane}, 1, 1
    v_lshl_add_u32 v{va0}, v{t1}, 3, v{va0}
    s_lshl_b32 s19, s{S_KH}, 5
    v_xor_b32 v{va0}, s19, v{va0}
    s_mul_i32 s19, s{S_KH}, 57344
    v_add_u32 v{va0}, s19, v{va0}
    v_xor_b32 v{va1}, 32, v{va0}""")
    def lda(ks):
        b = AF + 8 * (ks & 1)
        for mt in range(2):
            for u in range(2):
                k(f"ds_read_b64_tr_b16 {v(b+4*mt+2*u,2)}, v{(va0,va1)[mt]} offset:{ks*2048+u*512}")
    starts = {0: 4, 4: 10, 10: 18, 18: 28}
    def sync_for(ks):
        k(f"s_waitcnt vmcnt({2*(28-starts[ks])+2})\ns_barrier")
    k.mark(1)
    sync_for(0); k.mark(2); lda(0)
    for ks in range(28):
        if ks + 1 < 28:
            if (ks + 1) in starts: sync_for(ks + 1)
            lda(ks + 1); k("s_waitcnt lgkmcnt(4)")
        else: k("s_waitcnt lgkmcnt(0)")
        b = AF + 8 * (ks & 1)
        k(f"{mf} {v(D0,16)}, {v(b,4)}, {a(4*ks,4)}, {'0' if ks==0 else v(D0,16)}")
        k(f"{mf} {v(D1,16)}, {v(b+4,4)}, {a(4*ks,4)}, {'0' if ks==0 else v(D1,16)}")
    k.mark(3)
    k(f"""s_lshl_b32 s19, s{S_W}, 12
    v_add_u32 v{t0}, s19, v{l16}
    v_xor_b32 v{t1}, 0x2000, v{t0}
    v_add_u32 v{t0}, {XOFF}, v{t0}
    v_add_u32 v{t1}, {XOFF}, v{t1}""")
    for j in range(4): k(f"ds_write_b128 v{t0}, {v(D1+4*j,4)} offset:{1024*j}")
    k("s_waitcnt vmcnt(0)")
    for j in range(8):
        k(f"v_lshlrev_b32 v{T+2*j}, 16, v{XB+j}\nv_and_b32 v{T+2*j+1}, 0xffff0000, v{XB+j}")
    for t in range(16): k(f"v_add_f32 v{D0+t}, v{D0+t}, v{T+t}")
    k("s_waitcnt lgkmcnt(0)\ns_barrier")
    for j in range(4): k(f"ds_read_b128 {v(D1+4*j,4)}, v{t1} offset:{1024*j}")
    for j in range(4):
        k(f"s_waitcnt lgkmcnt({3-j})")
        for t in range(4*j, 4*j+4): k(f"v_add_f32 v{D0+t}, v{D0+t}, v{D1+t}")
    k.mark(4)
    m1 = k.label("m1")
    k(f"s_cmp_lg_u32 s9, 0\ns_cbranch_scc1 {m1}")
    for j in range(8): k(f"v_cvt_pk_bf16_f32 v{XB+j}, v{D0+2*j}, v{D0+2*j+1}")
    k(f"""buffer_store_dwordx4 {v(XB,4)}, v{vst}, s[48:51], s8 offen
    buffer_store_dwordx4 {v(XB+4,4)}, v{vst}, s[48:51], s8 offen offset:16
    v_cmp_ne_u32 vcc, 0, v{t2}
    v_cndmask_b32 v{t0}, 0, v{D0}, vcc""")
    for t in range(16):
        if t: k(f"v_cndmask_b32 v{t0}, 0, v{D0+t}, vcc")
        k(f"v_mul_f32 v{T+t}, v{t0}, v{D0+t}")
    for t in range(8):
        k(f"v_permlane16_swap_b32 v{T+t}, v{T+8+t}")
    for t in range(8):
        k(f"v_add_f32 v{T+t}, v{T+t}, v{T+8+t}")
    def rs(nout, bit, dpp):
        k(f"v_and_b32 v{t0}, {bit}, v{lane}\nv_cmp_ne_u32 vcc, 0, v{t0}")
        for i in range(nout):
            k(f"""v_cndmask_b32 v{T+8+i}, v{T+nout+i}, v{T+i}, vcc
            v_cndmask_b32 v{T+i}, v{T+i}, v{T+nout+i}, vcc""")
        for i in range(nout):
            k(f"v_add_f32_dpp v{T+i}, v{T+8+i}, v{T+i} {dpp} row_mask:0xf bank_mask:0xf")
    rs(4, 8, "row_ror:8"); rs(2, 4, "row_half_mirror"); rs(1, 2, "quad_perm:[2,3,0,1]")
    k(f"""v_add_f32_dpp v{T}, v{T}, v{T} quad_perm:[1,0,3,2] row_mask:0xf bank_mask:0xf
    v_bfe_u32 v{t0}, v{lane}, 1, 4
    v_lshrrev_b32 v{t1}, 5, v{lane}
    v_lshl_add_u32 v{t0}, v{t1}, 5, v{t0}
    v_lshlrev_b32 v{t0}, 2, v{t0}
    s_lshl_b32 s21, s21, 1
    s_add_u32 s21, s21, {SSQ2}
    s_mov_b32 exec_lo, 0x55555555
    s_mov_b32 exec_hi, 0x55555555
    buffer_atomic_add_f32 v{T}, v{t0}, s[48:51], s21 offen
    s_endpgm
    {m1}:""")
    srd(k, 52, 40, 2048 * 448 * 4)
    k(f"""s_mul_i32 s21, s21, 896
    v_lshrrev_b32 v{t1}, 5, v{lane}
    v_mul_u32_u24 v{t1}, {32*1792}, v{t1}
    v_lshl_add_u32 v{t1}, v{t2}, 2, v{t1}""")
    for t in range(16):
        if t and t % 2 == 0: k(f"s_add_u32 s21, s21, 3584")
        k(f"buffer_store_dword v{D0+t}, v{t1}, s[52:55], s21 offen offset:{1792*(t&1)}")
    k("s_endpgm")

def entry(k, ht, wb, xi, xo, mode, tail):
    k(f"""s_load_dwordx2 s[40:41], s[0:1], 96
    s_load_dwordx2 s[44:45], s[0:1], 112
    s_cmp_ge_u32 s2, 224
    s_cbranch_scc1 L_{k.name}_x
    s_mov_b32 s4, {ht}
    s_mov_b32 s5, {wb}
    s_mov_b32 s6, {xi}
    s_mov_b32 s8, {xo}
    s_mov_b32 s9, {mode}
    {tail}""")

def build_k4():
    k = Kernel("k4")
    entry(k, HT1, WC, X1P, X2T, 0, "L_k4_body:")
    body(k)
    k("L_k4_x:\ns_endpgm")
    k7 = Kernel("k7")
    entry(k7, HT2, WC7, RT, 0, 1, "s_branch L_k4_body")
    k7("L_k7_x:\ns_endpgm")
    info = dict(grid=224, lds=K4_LDS, nv=84, na=112, ns=64)
    return (k, info), (k7, info)
```

```python
import sys, re
from common import *
import k1, k2, k3, k4
from gen import HDR
NAME = "interleave_layers__spectral_gfnet__ssm_conv_s5__prompt_kernel"
def build(path, spin, as_list):
    ks = []
    a, i = k1.build_k1(); ks.append(("k1", a, i))
    (a, i), (b, j) = k2.build_k2(); ks.append(("k2", a, i)); ks.append(("k5", b, j))
    (a, i), (b, j) = k3.build_k3(); ks.append(("k3", a, i)); ks.append(("k6", b, j))
    (a, i), (b, j) = k4.build_k4(); ks.append(("k4", a, i)); ks.append(("k7", b, j))
    order = ["k1","k2","k3","k4","k5","k6","k7"]
    out = [HDR.rstrip()]
    if as_list: out.append(f"; @launch kernel={NAME} grid=(256,1,1) block=(256,1,1) lds=131072")
    else: out.append("; @launch grid=(256,1,1) block=(256,1,1) lds=131072")
    out.append('.amdgcn_target "amdgcn-amd-amdhsa--gfx950"\n.text')
    out.append(f".globl {NAME}\n.p2align 8\n.type {NAME},@function\n{NAME}:")
    out.append("""s_memrealtime s[94:95]
s_cmp_ge_u32 s2, 256
s_cbranch_scc1 L_exit
s_mov_b32 s96, s2
s_mov_b32 s97, 0
s_branch P_k1
L_exit:
s_endpgm
L_phase_end:
s_mov_b64 exec, -1
s_waitcnt vmcnt(0) lgkmcnt(0)
s_barrier
s_cmp_lg_u32 s97, 0
s_cbranch_scc1 L_bar
s_cmp_ge_u32 s2, 256
s_cbranch_scc1 L_bar
s_add_u32 s2, s2, 256
s_branch P_k1
L_bar:
s_cmp_eq_u32 s97, 6
s_cbranch_scc1 L_fin
s_add_u32 s97, s97, 1
v_readfirstlane_b32 s4, v0
s_load_dwordx2 s[6:7], s[0:1], 104
s_waitcnt lgkmcnt(0)
s_cmp_lt_u32 s4, 64
s_cbranch_scc0 L_bar2
buffer_wbl2 sc1
s_waitcnt vmcnt(0)
s_and_b32 s5, s96, 7
s_lshl_b32 s5, s5, 5
v_mov_b32 v1, s5
v_mov_b32 v2, 1
s_mov_b64 exec, 1
global_atomic_add v1, v2, s[6:7] sc1
s_mov_b64 exec, 0xff
v_lshlrev_b32 v1, 5, v0
s_lshl_b32 s5, s97, 5
s_mov_b32 s8, 200000
L_poll:
global_load_dword v2, v1, s[6:7] sc1
s_waitcnt vmcnt(0)
v_cmp_gt_u32 vcc, s5, v2
s_nop 1
s_cbranch_vccz L_pollx
s_sleep 1
s_sub_u32 s8, s8, 1
s_cmp_lg_u32 s8, 0
s_cbranch_scc1 L_poll
L_pollx:
s_mov_b64 exec, -1
buffer_inv sc1
s_waitcnt vmcnt(0)
L_bar2:
s_barrier
s_mov_b32 s2, s96""")
    for n, nm in enumerate(order[1:], 1):
        out.append(f"s_cmp_eq_u32 s97, {n}\ns_cbranch_scc1 P_{nm}")
    out.append("L_fin:")
    if spin:
        out.append("""s_cmp_lg_u32 s96, 0
s_cbranch_scc1 L_exit2
s_mov_b32 s10, 20000
L_sp:
s_memrealtime s[8:9]
s_waitcnt lgkmcnt(0)
s_sub_u32 s8, s8, s94
s_sub_u32 s10, s10, 1
s_cmp_eq_u32 s10, 0
s_cbranch_scc1 L_exit2
s_cmp_lt_u32 s8, 10000
s_cbranch_scc1 L_sp""")
    out.append("L_exit2:\ns_endpgm")
    for n, kk, i in ks:
        out.append(f"P_{n}:")
        for l in kk.finish():
            out.append("s_nop 7\ns_nop 7\ns_branch L_phase_end" if l.strip() == "s_endpgm" else l)
    out.append('.section .rodata,"a"')
    out.append(descriptor(NAME, 208, 168, 100))
    out.append(q_tables() + "\n" + k2.fft_table())
    open(path, "w").write("\n".join(out) + "\n")
build("p_single.s", False, False)
build("p_single_spin.s", True, False)
build("p_list_spin.s", True, True)
```

```python
import re

def v(i, n=1):
    return f"v{i}" if n == 1 else f"v[{i}:{i+n-1}]"
def a(i, n=1):
    return f"a{i}" if n == 1 else f"a[{i}:{i+n-1}]"
def s(i, n=1):
    return f"s{i}" if n == 1 else f"s[{i}:{i+n-1}]"

class Alloc:
    def __init__(self, lo, hi):
        self.lo, self.hi = lo, hi
        self.used = set()
        self.hwm = lo
    def get(self, n=1, align=None):
        if align is None:
            align = 1 if n == 1 else (2 if n == 2 else 4)
        i = self.lo
        while True:
            i = (i + align - 1) // align * align
            if i + n > self.hi:
                raise RuntimeError(f"out of registers (need {n})")
            if all((i + k) not in self.used for k in range(n)):
                for k in range(n): self.used.add(i + k)
                self.hwm = max(self.hwm, i + n)
                return i
            i += 1
    def free(self, i, n=1):
        for k in range(n):
            assert (i + k) in self.used, (i, n)
            self.used.remove(i + k)

_reg_re = re.compile(r"^-?\|?(?:abs\()?-?([vas])(?:(\d+)|\[(\d+):(\d+)\])\)?\|?$")
def parse_reg(op):
    op = op.strip()
    if op in ("vcc",): return [("s", "vcc_lo"), ("s", "vcc_hi")]
    if op in ("vcc_lo", "vcc_hi", "m0", "exec_lo", "exec_hi"): return [("s", op)]
    if op == "exec": return [("s", "exec_lo"), ("s", "exec_hi")]
    m = _reg_re.match(op)
    if not m: return []
    k = m.group(1)
    if m.group(2) is not None: return [(k, int(m.group(2)))]
    return [(k, i) for i in range(int(m.group(3)), int(m.group(4)) + 1)]

TRANS = ("v_exp_f32", "v_log_f32", "v_rcp_f32", "v_rsq_f32", "v_sqrt_f32", "v_sin_f32", "v_cos_f32", "v_rcp_iflag_f32")

class Ins:
    __slots__ = ("text", "mn", "ops", "mods", "rd", "wr", "kind", "passes", "srcc", "srcab", "is_label", "dpp", "sgpr_rd_vmem", "store_data", "lanesel", "target")
    def __init__(self, text):
        self.text = text
        t = text.split(";")[0].strip()
        self.is_label = t.endswith(":")
        self.rd = set(); self.wr = set(); self.kind = "other"; self.passes = 0
        self.srcc = set(); self.srcab = set(); self.dpp = False; self.store_data = set(); self.lanesel = set(); self.target = None
        self.mn = ""; self.ops = []; self.mods = ""
        if self.is_label or not t or t.startswith("."):
            self.kind = "label" if self.is_label else "dir"
            return
        parts = t.split(None, 1)
        self.mn = mn = parts[0]
        rest = parts[1] if len(parts) > 1 else ""
        ops = []; cur = ""; depth = 0
        for ch in rest:
            if ch in "[(": depth += 1
            if ch in "])": depth -= 1
            if ch == "," and depth == 0: ops.append(cur.strip()); cur = ""
            else: cur += ch
        if cur.strip(): ops.append(cur.strip())
        if ops:
            w = ops[-1].split(None, 1)
            ops[-1] = w[0]
            self.mods = w[1] if len(w) > 1 else ""
        self.ops = ops
        R = lambda i: set(parse_reg(ops[i])) if i < len(ops) else set()
        base = re.sub(r"_(e32|e64|dpp|sdwa)$", "", mn)
        if mn.startswith("v_mfma"):
            self.kind = "mfma"
            self.passes = 8 if "32x32x16" in mn else (4 if "16x16x32" in mn else None)
            assert self.passes, mn
            self.wr = R(0); self.srcab = R(1) | R(2); self.srcc = R(3); self.rd = self.srcab | self.srcc
        elif mn.startswith("v_"):
            self.kind = "valu"
            if base in TRANS: self.kind = "trans"
            if base.startswith("v_dot2"): self.kind = "dot"
            self.dpp = mn.endswith("_dpp") or "quad_perm" in self.mods or "row_" in self.mods
            if base.startswith("v_cmp"):
                self.wr = R(0); self.rd = R(1) | R(2)
                assert not base.startswith("v_cmpx"), "avoid cmpx"
            elif base in ("v_readfirstlane_b32", "v_readlane_b32"):
                self.kind = "readlane"; self.wr = R(0); self.rd = R(1) | R(2); self.lanesel = R(2)
            elif base == "v_writelane_b32":
                self.wr = R(0); self.rd = R(0) | R(1) | R(2); self.lanesel = R(2)
            elif base.startswith("v_permlane"):
                self.kind = "permlane"; self.wr = R(0) | R(1); self.rd = R(0) | R(1)
            elif base in ("v_add_co_u32", "v_sub_co_u32", "v_subrev_co_u32"):
                self.wr = R(0) | R(1); self.rd = R(2) | R(3)
            elif base in ("v_addc_co_u32", "v_subb_co_u32"):
                self.wr = R(0) | R(1); self.rd = R(2) | R(3) | R(4)
            elif base in ("v_fmac_f32", "v_dot2c_f32_bf16", "v_pk_fmac_f16"):
                self.wr = R(0); self.rd = R(0) | R(1) | R(2)
            elif base == "v_cndmask_b32":
                self.wr = R(0); self.rd = R(1) | R(2) | (R(3) if len(ops) > 3 else set(parse_reg("vcc")))
            elif base == "v_nop":
                pass
            else:
                self.wr = R(0)
                for i in range(1, len(ops)): self.rd |= R(i)
                if self.dpp or "UNUSED_PRESERVE" in self.mods: self.rd |= R(0)
        elif mn.startswith("ds_"):
            self.kind = "ds"
            if mn.startswith("ds_read") or mn.startswith("ds_bpermute") or mn.startswith("ds_permute") or mn.startswith("ds_swizzle"):
                self.wr = R(0)
                for i in range(1, len(ops)): self.rd |= R(i)
                if "d16" in mn: self.rd |= R(0)
            else:
                for i in range(len(ops)): self.rd |= R(i)
        elif mn.startswith("buffer_"):
            self.kind = "vmem"
            lds = re.search(r"\blds\b", self.mods) is not None
            if mn.startswith("buffer_load") and lds:
                self.kind = "vmem_lds"
                for i in range(len(ops)): self.rd |= R(i)
                self.rd.add(("s", "m0"))
            elif mn.startswith("buffer_load"):
                self.wr = R(0)
                for i in range(1, len(ops)): self.rd |= R(i)
                if "d16" in mn: self.rd |= R(0)
            elif mn.startswith("buffer_store") or mn.startswith("buffer_atomic"):
                for i in range(len(ops)): self.rd |= R(i)
                if "x3" in mn or "x4" in mn: self.store_data = R(0)
                if mn.startswith("buffer_atomic") and "sc0" in self.mods: self.wr = R(0)
            else:
                self.kind = "vmem_misc"
        elif mn.startswith("global_"):
            self.kind = "vmem"
            if mn.startswith("global_load_lds"):
                self.kind = "vmem_lds"
                for i in range(len(ops)): self.rd |= R(i)
                self.rd.add(("s", "m0"))
            elif mn.startswith("global_load"):
                self.wr = R(0)
                for i in range(1, len(ops)): self.rd |= R(i)
            else:
                for i in range(len(ops)): self.rd |= R(i)
                if "x3" in mn or "x4" in mn: self.store_data = R(1)
        elif mn.startswith("s_"):
            self.kind = "salu"
            if mn.startswith("s_load") or mn.startswith("s_buffer_load") or mn in ("s_memtime", "s_memrealtime"):
                self.kind = "smem"; self.wr = R(0)
                for i in range(1, len(ops)): self.rd |= R(i)
            elif mn in ("s_waitcnt", "s_barrier", "s_nop", "s_endpgm", "s_sleep", "s_setprio"):
                self.kind = mn
            elif mn.startswith("s_cbranch") or mn == "s_branch":
                self.kind = "branch"; self.target = ops[0]
                if "vcc" in mn: self.rd = set(parse_reg("vcc"))
            elif mn.startswith("s_cmp") or mn.startswith("s_bitcmp"):
                for i in range(len(ops)): self.rd |= R(i)
            elif "saveexec" in mn:
                self.wr = R(0) | set(parse_reg("exec")); self.rd = R(1) | set(parse_reg("exec"))
            else:
                self.wr = R(0)
                for i in range(1, len(ops)): self.rd |= R(i)
                if mn in ("s_addk_i32", "s_mulk_i32"): self.rd |= R(0)
        else:
            raise ValueError("unknown instruction: " + text)
    def states(self):
        if self.kind in ("label", "dir"): return 0
        if self.kind == "s_nop": return int(self.ops[0], 0) + 1
        return 1

VALU_KINDS = ("valu", "trans", "dot", "readlane", "permlane")
def need(prod, cons):
    n = 0
    pk, ck = prod.kind, cons.kind
    pw_v = {r for r in prod.wr if r[0] in "va"}
    pw_s = {r for r in prod.wr if r[0] == "s"}
    if pk in VALU_KINDS:
        if ck == "mfma" and (pw_v & cons.rd): n = max(n, 2)
        if pk == "trans" and ck in VALU_KINDS + ("mfma",) and ck != "trans" and (pw_v & cons.rd): n = max(n, 1)
        if pk == "trans" and ck == "trans" and (pw_v & cons.rd): n = max(n, 1)
        if pk == "dot" and ck in VALU_KINDS + ("mfma", "ds", "vmem") and (pw_v & (cons.rd | cons.wr)):
            same = (cons.mn == prod.mn)
            if same and ck == "dot":
                ab = set()
                for i in (1, 2): ab |= set(parse_reg(cons.ops[i]))
                if pw_v & ab: n = max(n, 3)
            else: n = max(n, 3)
        if ck == "readlane" and (pw_v & cons.rd): n = max(n, 1)
        if ck == "permlane" and (pw_v & cons.rd): n = max(n, 2)
        if cons.dpp and (pw_v & cons.rd): n = max(n, 2)
        if pw_s:
            if ck in VALU_KINDS + ("mfma",) and (pw_s & cons.rd): n = max(n, 2)
            if cons.lanesel & pw_s: n = max(n, 4)
            if ck in ("vmem", "vmem_lds") and (pw_s & cons.rd): n = max(n, 5)
            if ck in ("salu", "branch", "smem") and (pw_s & cons.rd): n = max(n, 1)
        if ("sdwa" in prod.mn and "dst_sel:DWORD" not in prod.mods) and ck in VALU_KINDS and (pw_v & (cons.rd | cons.wr)): n = max(n, 1)
    if pk == "mfma":
        big = prod.passes == 8
        D = prod.wr
        if ck == "mfma":
            if D & cons.srcab: n = max(n, 12 if big else 8)
            if D & cons.srcc:
                if not (cons.srcc == D and cons.passes == prod.passes): n = max(n, 10 if big else 6)
            elif D & cons.wr: n = max(n, 12 if big else 8)
        elif ck in VALU_KINDS + ("ds", "vmem", "vmem_lds"):
            if D & (cons.rd | cons.wr): n = max(n, 12 if big else 8)
        if ck in VALU_KINDS and (prod.srcc & cons.wr): n = max(n, 7 if big else 3)
        if ck in ("ds", "vmem") and (prod.srcc & cons.wr): n = max(n, 7 if big else 3)
    if pk == "salu" and ("s", "m0") in prod.wr and ck == "vmem_lds": n = max(n, 1)
    if prod.store_data:
        if ck in VALU_KINDS + ("mfma",) and (prod.store_data & cons.wr): n = max(n, 2)
        elif prod.store_data & cons.wr: n = max(n, 1)
    return n

WINDOW = 14
def fix_hazards(lines):
    ins = [Ins(l) for l in lines]
    labels = {}
    for i, x in enumerate(ins):
        if x.is_label: labels[x.text.split(";")[0].strip()[:-1]] = i
    out = []
    def required(hist, cons):
        d = 0; req = 0
        for p in reversed(hist):
            if p.kind in ("label", "dir"): continue
            r = need(p, cons)
            if r > d: req = max(req, r - d)
            d += p.states()
            if d >= WINDOW: break
        return req
    def nop(k):
        res = []
        while k > 0:
            m = min(k, 16); res.append(Ins(f"s_nop {m-1}")); k -= m
        return res
    for i, x in enumerate(ins):
        if x.kind in ("label", "dir"):
            out.append(x); continue
        hist = out[-40:]
        r = required(hist, x)
        if r: out.extend(nop(r))
        if x.kind == "branch" and x.target in labels:
            hist2 = out[-40:] + [x]
            extra = 0; d = 0; j = labels[x.target]
            sim = list(hist2)
            while j < len(ins) and d < WINDOW:
                y = ins[j]; j += 1
                if y.kind in ("label", "dir"): continue
                rr = required(sim, y)
                dd = d; req = 0
                for p in reversed(hist2):
                    if p.kind in ("label", "dir"): continue
                    q = need(p, y)
                    if q > dd: req = max(req, q - dd)
                    dd += p.states()
                    if dd >= WINDOW: break
                extra = max(extra, req)
                d += y.states()
                if y.kind == "branch" and y.mn == "s_branch": break
                if y.kind == "s_endpgm": break
            if extra: out.extend(nop(extra))
        out.append(x)
    return out

def check_waits(ins, name=""):
    vm = []
    lg = []
    errs = []
    def touch(x):
        regs = x.rd | x.wr
        for q in vm:
            if q & regs: errs.append(f"{name}: vmcnt hazard at '{x.text.strip()}' regs {sorted(q & regs, key=str)[:4]}")
        for k, q in lg:
            if q & regs:
                if k == "ds" and x.kind == "ds" and not (q & x.rd - x.wr): continue
                errs.append(f"{name}: lgkmcnt hazard at '{x.text.strip()}' regs {sorted(q & regs, key=str)[:4]}")
    for x in ins:
        if x.kind in ("label", "dir") or "@side" in x.text: continue
        if x.kind == "s_waitcnt":
            t = x.text.split(";")[0]
            m = re.search(r"vmcnt\((\d+)\)", t)
            if m:
                n = int(m.group(1))
                while len(vm) > n: vm.pop(0)
            m = re.search(r"lgkmcnt\((\d+)\)", t)
            if m:
                n = int(m.group(1))
                if n == 0: lg.clear()
                else:
                    if any(k == "smem" for k, _ in lg): errs.append(f"{name}: counted lgkmcnt with smem outstanding")
                    while len(lg) > n: lg.pop(0)
            continue
        if x.kind == "s_endpgm":
            vm.clear(); lg.clear(); continue
        touch(x)
        if x.kind in ("vmem", "vmem_lds", "vmem_misc"):
            vm.append(set(x.wr))
            if len(vm) > 63: errs.append(f"{name}: >63 vmem outstanding at '{x.text.strip()}'")
        elif x.kind == "ds":
            lg.append(("ds", set(x.wr)))
        elif x.kind == "smem":
            lg.append(("smem", set(x.wr)))
    return errs

def auto_waits(lines):
    out = []
    vm = []
    lg = []
    def emit(vn, ln):
        parts = []
        if vn is not None:
            vn = min(vn, 63); parts.append(f"vmcnt({vn})")
            while len(vm) > vn: vm.pop(0)
        if ln is not None:
            ln = min(ln, 15); parts.append(f"lgkmcnt({ln})")
            while len(lg) > ln: lg.pop(0)
        if parts: out.append("s_waitcnt " + " ".join(parts))
    for l in lines:
        t = l.split(";")[0].strip()
        m = re.search(r"@t=(\w+)", l); tag = m.group(1) if m else None
        if t.startswith("waitvm ") or t.startswith("waitlg "):
            name = t.split()[1]
            q = vm if t.startswith("waitvm") else lg
            idx = [i for i, e in enumerate(q) if e[-1] == name]
            if idx:
                n = len(q) - 1 - idx[-1]
                if q is vm: emit(n, None)
                else:
                    if any(e[0] == "smem" for e in lg): n = 0
                    emit(None, n)
            continue
        x = Ins(l)
        if x.kind in ("label", "dir"): out.append(l); continue
        if "@side" in l: out.append(l); continue
        if x.kind == "s_waitcnt":
            mm = re.search(r"vmcnt\((\d+)\)", t)
            if mm:
                while len(vm) > int(mm.group(1)): vm.pop(0)
            mm = re.search(r"lgkmcnt\((\d+)\)", t)
            if mm:
                while len(lg) > int(mm.group(1)): lg.pop(0)
            out.append(l); continue
        if x.kind == "s_endpgm":
            vm.clear(); lg.clear(); out.append(l); continue
        regs = x.rd | x.wr
        vn = None; ln = None
        for i, e in enumerate(vm):
            if e[0] & regs: vn = len(vm) - 1 - i
        for i, e in enumerate(lg):
            if e[1] & regs: ln = len(lg) - 1 - i
        if ln is not None and any(e[0] == "smem" for e in lg): ln = 0
        emit(vn, ln)
        out.append(l)
        if x.kind in ("vmem", "vmem_lds", "vmem_misc"):
            vm.append((set(x.wr), tag))
            assert len(vm) <= 63, "too many vmem outstanding: " + l
        elif x.kind == "ds": lg.append(("ds", set(x.wr), tag))
        elif x.kind == "smem": lg.append(("smem", set(x.wr), tag))
    return out

def weave(main, fill, per=1, start=0, after=None):
    if after is None: after = lambda s: s.strip().startswith("v_mfma")
    out = []; f = list(fill); cnt = 0
    for m in main:
        out.append(m)
        if after(m):
            cnt += 1
            if cnt > start:
                for _ in range(per):
                    if f: out.append(f.pop(0))
    out.extend(f)
    return out

def spread(main, fill, lo=0.0, hi=1.0):
    n = len(main); out = []; f = list(fill)
    if not f: return list(main)
    a, b = int(lo * n), int(hi * n)
    pos = [a + (b - a) * (i + 0.5) / len(f) for i in range(len(f))]
    j = 0
    for i, m in enumerate(main):
        while j < len(f) and pos[j] <= i and not m.strip().startswith(("s_cbranch", "s_cselect", "s_addc")):
            out.extend(f[j].split("\n")); j += 1
        out.append(m)
    while j < len(f): out.extend(f[j].split("\n")); j += 1
    return out

class Kernel:
    def __init__(self, name, nv_max=256, na_max=256):
        self.name = name; self.lines = []
        self.V = Alloc(1, nv_max); self.A = Alloc(0, na_max); self.S = Alloc(4, 100)
        self.uid = 0
    def __call__(self, text):
        for l in text.split("\n"):
            l = l.strip()
            if l: self.lines.append(l)
    def mark(self, i):
        import os
        if os.environ.get("STAMPS"):
            self(f"s_memtime s[76:77]\ns_waitcnt lgkmcnt(0)\ns_mov_b32 s{78+i}, s76")
    def label(self, base):
        self.uid += 1
        return f"L_{self.name}_{base}{self.uid}"
    def capture(self):
        prev = self.lines; self.lines = []; return prev
    def release(self, prev):
        cur = self.lines; self.lines = prev; return cur
    def finish(self):
        ins = fix_hazards(auto_waits(self.lines))
        errs = check_waits(ins, self.name)
        if errs:
            raise RuntimeError("\n".join(errs[:20]))
        return [x.text for x in ins]

def descriptor(name, nv, na, ns):
    acc = max(4, (nv + 3) // 4 * 4)
    nfv = acc + na if na else nv
    return f""".p2align 6
.amdhsa_kernel {name}
  .amdhsa_next_free_vgpr {nfv}
  .amdhsa_next_free_sgpr {ns}
  .amdhsa_accum_offset {acc}
  .amdhsa_group_segment_fixed_size 0
  .amdhsa_kernarg_size 120
  .amdhsa_user_sgpr_count 2
  .amdhsa_user_sgpr_kernarg_segment_ptr 1
  .amdhsa_system_sgpr_workgroup_id_x 1
.end_amdhsa_kernel"""
```

```python
from common import *

QSTR = 14400
N_A, N_B, N_D, N_C, N_W = 224, 49, 49, 98, 64
N_R = 28
K1_GRID = N_A + N_B + N_D + N_C + N_W + N_R
K1_LDS = 4 * QSTR

def prologue_ptrs(k):
    k("""s_load_dwordx16 s[16:31], s[0:1], 0
    s_load_dwordx8 s[32:39], s[0:1], 64
    s_load_dwordx4 s[40:43], s[0:1], 96
    s_load_dwordx2 s[44:45], s[0:1], 112""")

def wave_lane(k, s_w, v_lane, vt):
    k(f"""v_lshrrev_b32 v{vt}, 6, v0
    v_and_b32 v{v_lane}, 63, v0
    v_readfirstlane_b32 s{s_w}, v{vt}""")

def q_dma_issue(k, i, v_l16, s_qoff, s_lds):
    if i % 4 == 0:
        if i == 0:
            k(f"s_mov_b32 m0, s{s_lds}")
        else:
            k(f"s_add_u32 s{s_qoff}, s{s_qoff}, 4096\ns_add_u32 m0, m0, 4096")
    k(f"buffer_load_dwordx4 v{v_l16}, s[52:55], s{s_qoff} offen offset:{(i % 4) * 1024} lds")

def job_a(k):
    S_C, S_J, S_T, S_W, S_Q, S_L = 4, 5, 6, 7, 8, 9
    lane, l16, vx, t0, t1, t2 = 1, 2, 3, 4, 5, 6
    XF = 8
    ACC = 64
    BF = 80
    decode_cj(k, 2, S_C, S_J, S_T)
    wave_lane(k, S_W, lane, t0)
    table_ptr(k, 10, "tab_qj")
    srd(k, 52, 10, 28 * 14336)
    k(f"""v_lshlrev_b32 v{l16}, 4, v{lane}
    s_lshl_b32 s{S_Q}, s{S_J}, 2
    s_add_u32 s{S_Q}, s{S_Q}, s{S_W}
    s_mul_i32 s{S_Q}, s{S_Q}, 14336
    s_mul_i32 s{S_L}, s{S_W}, {QSTR}
    v_and_b32 v{t0}, 15, v{lane}
    v_lshrrev_b32 v{t1}, 4, v{lane}
    s_lshl_b32 s12, s{S_C}, 6
    s_lshl_b32 s13, s{S_W}, 4
    s_add_u32 s12, s12, s13          ; row0 = 64c+16w
    v_add_u32 v{t2}, s12, v{t0}
    v_mul_u32_u24 v{vx}, 896, v{t2}
    v_lshl_add_u32 v{vx}, v{t1}, 4, v{vx}""")
    for i in range(7): q_dma_issue(k, i, l16, S_Q, S_L)
    k("s_waitcnt lgkmcnt(0)")
    k.mark(0)
    srd(k, 56, 16, 2048 * 896)
    srd(k, 48, 44, WS_BYTES)
    for i in range(7): k(f"buffer_load_dwordx4 {v(XF+4*i,4)}, v{vx}, s[56:59], 0 offen offset:{64*i}")
    for i in range(7, 14): q_dma_issue(k, i, l16, S_Q, S_L)
    for i in range(7, 14): k(f"buffer_load_dwordx4 {v(XF+4*i,4)}, v{vx}, s[56:59], 0 offen offset:{64*i}")
    k(f"""v_mov_b32 v112, -1
    v_mov_b32 v113, -1
    v_mov_b32 v114, -1
    v_mov_b32 v115, -1
    v_lshlrev_b32 v116, 4, v0
    s_lshl_b32 s14, s2, 13
    s_add_u32 s14, s14, {X1T}
    s_add_u32 s15, s14, 4096
    buffer_store_dwordx4 v[112:115], v116, s[48:51], s14 offen
    buffer_store_dwordx4 v[112:115], v116, s[48:51], s15 offen""")
    def ldb(ks, buf):
        for nt in range(4):
            k(f"ds_read_b128 {v(BF+16*buf+4*nt,4)}, v{l16} offset:{nt*QSTR+ks*1024}")
    k.mark(1)
    k("s_waitcnt vmcnt(16)\ns_barrier")
    k.mark(2)
    ldb(0, 0)
    for ks in range(14):
        if ks == 6:
            k("s_waitcnt vmcnt(2)\ns_barrier")
        if ks + 1 < 14:
            ldb(ks + 1, (ks + 1) & 1)
            k("s_waitcnt lgkmcnt(4)")
        else:
            k("s_waitcnt lgkmcnt(0)")
        for nt in range(4):
            c = "0" if ks == 0 else v(ACC+4*nt, 4)
            k(f"v_mfma_f32_16x16x32_bf16 {v(ACC+4*nt,4)}, {v(XF+4*ks,4)}, {v(BF+16*(ks&1)+4*nt,4)}, {c}")
    k.mark(3)
    k(f"""s_lshl_b32 s13, s{S_J}, 18
    s_lshl_b32 s14, s12, 1
    s_add_u32 s13, s13, s14
    s_add_u32 s13, s13, {X0T}
    v_lshlrev_b32 v{t2}, 12, v{t0}
    v_lshl_add_u32 v{t2}, v{t1}, 3, v{t2}""")
    for nt in range(4):
        k(f"""v_cvt_pk_bf16_f32 v{BF+2*nt}, v{ACC+4*nt}, v{ACC+4*nt+1}
        v_cvt_pk_bf16_f32 v{BF+2*nt+1}, v{ACC+4*nt+2}, v{ACC+4*nt+3}
        buffer_store_dwordx2 {v(BF+2*nt,2)}, v{t2}, s[48:51], s13 offen""")
        if nt < 3: k("s_add_u32 s13, s13, 0x10000")
    done = k.label("adone")
    su, sq, su2, sq2 = 96, 97, 98, 99
    k(f"""s_mov_b32 s14, 0x3f803f80
    v_mov_b32 v{su}, 0
    v_mov_b32 v{sq}, 0
    v_mov_b32 v{su2}, 0
    v_mov_b32 v{sq2}, 0
    s_cmp_lg_u32 s{S_J}, 0
    s_cbranch_scc1 {done}""")
    for i in range(0, 56, 2):
        k(f"""v_dot2_f32_bf16 v{su}, v{XF+i}, s14, v{su}
        v_dot2_f32_bf16 v{sq}, v{XF+i}, v{XF+i}, v{sq}
        v_dot2_f32_bf16 v{su2}, v{XF+i+1}, s14, v{su2}
        v_dot2_f32_bf16 v{sq2}, v{XF+i+1}, v{XF+i+1}, v{sq2}""")
    k(f"""v_add_f32 v{su}, v{su}, v{su2}
    v_add_f32 v{sq}, v{sq}, v{sq2}""")
    for op in ("v_permlane16_swap_b32", "v_permlane32_swap_b32"):
        k(f"""v_mov_b32 v{su2}, v{su}
        v_mov_b32 v{sq2}, v{sq}
        {op} v{su}, v{su2}
        {op} v{sq}, v{sq2}
        v_add_f32 v{su}, v{su}, v{su2}
        v_add_f32 v{sq}, v{sq}, v{sq2}""")
    k(f"""v_mul_f32 v{su}, v{su}, v{su}
    v_fmac_f32 v{sq}, {fhex(-1/448)}, v{su}
    v_max_f32 v{sq}, 0, v{sq}
    v_cvt_pk_bf16_f32 v{sq}, v{sq}, v{sq}
    {done}:
    v_lshlrev_b32 v{t2}, 1, v{lane}
    s_lshl_b32 s13, s12, 1
    s_lshl_b32 s14, s{S_J}, 12
    s_add_u32 s13, s13, s14
    s_add_u32 s13, s13, {SP0}
    s_mov_b64 exec, 0xffff
    buffer_store_short v{sq}, v{t2}, s[48:51], s13 offen
    s_endpgm""")

def pre_common(k, S_JB, S_W, S_Q, S_L, lane, l16, va, t0, t1, t2):
    table_ptr(k, 10, "tab_qj")
    srd(k, 52, 10, 28 * 14336)
    k(f"""v_lshlrev_b32 v{l16}, 4, v{lane}
    s_lshl_b32 s{S_Q}, s{S_JB}, 2
    s_add_u32 s{S_Q}, s{S_Q}, s{S_W}
    s_mul_i32 s{S_Q}, s{S_Q}, 14336
    s_mul_i32 s{S_L}, s{S_W}, {QSTR}""")
    for i in range(14): q_dma_issue(k, i, l16, S_Q, S_L)
    k(f"""v_bfe_u32 v{t0}, v{lane}, 3, 1
    v_mul_u32_u24 v{va}, {QSTR}, v{t0}
    v_and_b32 v{t0}, 0x30, v{lane}
    v_bfe_u32 v{t1}, v{lane}, 2, 1
    v_lshl_add_u32 v{t0}, v{t1}, 3, v{t0}
    v_and_b32 v{t1}, 3, v{lane}
    v_add_u32 v{t0}, v{t0}, v{t1}
    v_lshl_add_u32 v{va}, v{t0}, 4, v{va}""")

def lda_perm(k, va, ks, base):
    for K in range(2):
        for mt in range(2):
            k(f"ds_read_b128 {v(base+8*K+4*mt,4)}, v{va} offset:{2*K*QSTR+ks*1024+64*mt}")

def job_b(k):
    S_ID, S_JB, S_PB, S_W, S_Q, S_L, S_PT = 4, 5, 6, 7, 8, 9, 12
    lane, l16, va, t0, t1, t2, vb, vp = 1, 2, 3, 4, 5, 6, 7, 8
    lre, lim, ldt, lr, li, cr, ci, msk = 9, 10, 11, 12, 13, 14, 15, 16
    BR, BI = 20, 76
    ACC = 132
    AF = 164
    k(f"s_sub_u32 s{S_ID}, s2, {N_A}")
    div7(k, S_JB, S_PB, S_ID)
    wave_lane(k, S_W, lane, t0)
    pre_common(k, S_JB, S_W, S_Q, S_L, lane, l16, va, t0, t1, t2)
    k(f"""s_lshl_b32 s{S_PT}, s{S_PB}, 2
    s_add_u32 s{S_PT}, s{S_PT}, s{S_W}
    s_lshl_b32 s13, s{S_PT}, 4
    v_and_b32 v{t0}, 15, v{lane}
    v_add_u32 v{vp}, s13, v{t0}            ; p
    v_lshrrev_b32 v{t1}, 4, v{lane}
    v_mul_u32_u24 v{vb}, 896, v{vp}
    v_lshl_add_u32 v{vb}, v{t1}, 4, v{vb}
    v_lshlrev_b32 v{vp}, 1, v{vp}
    s_waitcnt lgkmcnt(0)""")
    srd(k, 56, 28, 448 * 896); srd(k, 60, 30, 448 * 896); srd(k, 48, 44, WS_BYTES)
    k(f"""global_load_ushort v{lre}, v{vp}, s[24:25]
    global_load_ushort v{lim}, v{vp}, s[26:27]
    global_load_ushort v{ldt}, v{vp}, s[36:37]""")
    for i in range(14):
        k(f"buffer_load_dwordx4 {v(BR+4*i,4)}, v{vb}, s[56:59], 0 offen offset:{64*i}")
        k(f"buffer_load_dwordx4 {v(BI+4*i,4)}, v{vb}, s[60:63], 0 offen offset:{64*i}")
    k("s_waitcnt vmcnt(28)")
    emit_lam(k, lre, lim, ldt, lr, li, t0, t1)
    k(f"""v_add_f32 v{lr}, -1.0, v{lr}
    v_mul_f32 v{t0}, v{lre}, v{lre}
    v_fmac_f32 v{t0}, v{lim}, v{lim}
    v_rcp_f32 v{t0}, v{t0}
    v_mul_f32 v{cr}, v{lr}, v{lre}
    v_add_f32 v{t0}, v{t0}, v{t0}
    v_fmac_f32 v{cr}, v{li}, v{lim}
    v_mul_f32 v{ci}, v{li}, v{lre}
    v_fma_f32 v{ci}, -v{lr}, v{lim}, v{ci}
    v_mul_f32 v{cr}, v{cr}, v{t0}
    v_mul_f32 v{ci}, v{ci}, v{t0}
    v_mov_b32 v{msk}, 1.0
    v_cmp_gt_u32 vcc, 16, v{lane}
    s_cmp_eq_u32 s{S_JB}, 0
    s_cselect_b64 vcc, vcc, 0
    v_cndmask_b32 v{msk}, v{msk}, 0, vcc""")
    k("s_waitcnt vmcnt(0)\ns_barrier")
    lda_perm(k, va, 0, AF)
    for ks in range(14):
        if ks + 1 < 14:
            lda_perm(k, va, ks + 1, AF + 16 * ((ks + 1) & 1)); k("s_waitcnt lgkmcnt(4)")
        else: k("s_waitcnt lgkmcnt(0)")
        for tl in range(4):
            for part in range(2):
                d = ACC + 8 * tl + 4 * part
                c = "0" if ks == 0 else v(d, 4)
                k(f"v_mfma_f32_16x16x32_bf16 {v(d,4)}, {v(AF+16*(ks&1)+4*tl,4)}, {v((BR,BI)[part]+4*ks,4)}, {c}")
    k(f"""s_mul_i32 s13, s{S_PT}, 28
    s_lshl_b32 s14, s{S_JB}, 1
    s_add_u32 s13, s13, s14
    s_lshl_b32 s13, s13, 10
    s_add_u32 s13, s13, {WBB}
    s_add_u32 s14, s13, {14*1024}""")
    O = 20
    k(f"v_mul_f32 v{ACC}, v{ACC}, v{msk}\nv_mul_f32 v{ACC+4}, v{ACC+4}, v{msk}")
    for K in range(2):
        for mt in range(2):
            d = ACC + 8 * (2 * K + mt)
            for i in range(4):
                k(f"""v_mul_f32 v{O+i}, v{d+i}, v{cr}
                v_fma_f32 v{O+i}, -v{d+4+i}, v{ci}, v{O+i}
                v_mul_f32 v{O+4+i}, v{d+i}, v{ci}
                v_fmac_f32 v{O+4+i}, v{d+4+i}, v{cr}""")
            P = 32 + 8 * K
            k(f"""v_cvt_pk_bf16_f32 v{P+2*mt}, v{O}, v{O+1}
            v_cvt_pk_bf16_f32 v{P+2*mt+1}, v{O+2}, v{O+3}
            v_cvt_pk_bf16_f32 v{P+4+2*mt}, v{O+4}, v{O+5}
            v_cvt_pk_bf16_f32 v{P+4+2*mt+1}, v{O+6}, v{O+7}""")
        k(f"""buffer_store_dwordx4 {v(32+8*K,4)}, v{l16}, s[48:51], s13 offen offset:{1024*K}
        buffer_store_dwordx4 {v(36+8*K,4)}, v{l16}, s[48:51], s14 offen offset:{1024*K}""")
    k("s_endpgm")

def job_d(k):
    S_ID, S_JB, S_OB, S_W, S_Q, S_L, S_JT = 4, 5, 6, 7, 8, 9, 12
    lane, l16, va, t0, t1, t2, vd, msk = 1, 2, 3, 4, 5, 6, 7, 8
    QF, DF = 20, 76
    ACC = 132
    AF = 164
    T = 200
    k(f"s_sub_u32 s{S_ID}, s2, {N_A+N_B}")
    div7(k, S_JB, S_OB, S_ID)
    wave_lane(k, S_W, lane, t0)
    pre_common(k, S_JB, S_W, S_Q, S_L, lane, l16, va, t0, t1, t2)
    k(f"""s_lshl_b32 s{S_JT}, s{S_OB}, 2
    s_add_u32 s{S_JT}, s{S_JT}, s{S_W}
    s_mul_i32 s13, s{S_JT}, 14336
    v_and_b32 v{vd}, 0x30, v{lane}       ; 16*g bytes
    s_waitcnt lgkmcnt(0)""")
    srd(k, 56, 38, 896); srd(k, 48, 44, WS_BYTES)
    for i in range(14):
        if i and i % 4 == 0: k("s_add_u32 s13, s13, 4096")
        k(f"buffer_load_dwordx4 {v(QF+4*i,4)}, v{l16}, s[52:55], s13 offen offset:{1024*(i%4)}")
        k(f"buffer_load_dwordx4 {v(DF+4*i,4)}, v{vd}, s[56:59], 0 offen offset:{64*i}")
    k(f"""v_mov_b32 v{msk}, 1.0
    v_cmp_gt_u32 vcc, 16, v{lane}
    s_cmp_eq_u32 s{S_JB}, 0
    s_cselect_b64 vcc, vcc, 0
    v_cndmask_b32 v{msk}, v{msk}, 0, vcc""")
    for i in range(14):
        k(f"s_waitcnt vmcnt({2*(13-i)})")
        for r in range(4):
            q, d = QF + 4 * i + r, DF + 4 * i + r
            k(f"""v_lshlrev_b32 v{T}, 16, v{q}
            v_lshlrev_b32 v{T+1}, 16, v{d}
            v_and_b32 v{q}, 0xffff0000, v{q}
            v_and_b32 v{d}, 0xffff0000, v{d}
            v_mul_f32 v{T}, v{T}, v{T+1}
            v_mul_f32 v{q}, v{q}, v{d}
            v_cvt_pk_bf16_f32 v{q}, v{T}, v{q}""")
    k("s_barrier")
    lda_perm(k, va, 0, AF)
    for ks in range(14):
        if ks + 1 < 14:
            lda_perm(k, va, ks + 1, AF + 16 * ((ks + 1) & 1)); k("s_waitcnt lgkmcnt(4)")
        else: k("s_waitcnt lgkmcnt(0)")
        for tl in range(4):
            d = ACC + 4 * tl
            c = "0" if ks == 0 else v(d, 4)
            k(f"v_mfma_f32_16x16x32_bf16 {v(d,4)}, {v(AF+16*(ks&1)+4*tl,4)}, {v(QF+4*ks,4)}, {c}")
    k(f"""s_mul_i32 s13, s{S_JT}, 14
    s_lshl_b32 s14, s{S_JB}, 1
    s_add_u32 s13, s13, s14
    s_lshl_b32 s13, s13, 10
    s_add_u32 s13, s13, {WBD}
    v_mul_f32 v{ACC}, v{ACC}, v{msk}""")
    for K in range(2):
        for mt in range(2):
            d = ACC + 4 * (2 * K + mt)
            k(f"""v_cvt_pk_bf16_f32 v{20+4*K+2*mt}, v{d}, v{d+1}
            v_cvt_pk_bf16_f32 v{20+4*K+2*mt+1}, v{d+2}, v{d+3}""")
        k(f"buffer_store_dwordx4 {v(20+4*K,4)}, v{l16}, s[48:51], s13 offen offset:{1024*K}")
    k("s_endpgm")

def job_c(k):
    S_ID, S_PART, S_PB, S_OB, S_W, S_JT, S_G = 4, 5, 6, 8, 7, 12, 9
    lane, l16, va, va2, t0, t1, t2, vg = 1, 2, 3, 9, 4, 5, 6, 7
    QF = 20
    ACC = 132
    AF = 164
    k(f"""s_sub_u32 s{S_ID}, s2, {N_A+N_B+N_D}
    s_cmp_ge_u32 s{S_ID}, 49
    s_cselect_b32 s{S_PART}, 1, 0
    s_mul_i32 s13, s{S_PART}, 49
    s_sub_u32 s{S_ID}, s{S_ID}, s13""")
    div7(k, S_PB, S_OB, S_ID)
    wave_lane(k, S_W, lane, t0)
    table_ptr(k, 10, "tab_qj")
    srd(k, 52, 10, 28 * 14336)
    k(f"""v_lshlrev_b32 v{l16}, 4, v{lane}
    v_lshrrev_b32 v{t0}, 3, v{lane}
    v_mul_u32_u24 v{vg}, 896, v{t0}
    v_bfe_u32 v{t0}, v{lane}, 4, 1
    v_lshlrev_b32 v{t0}, 2, v{t0}
    v_and_b32 v{t1}, 7, v{lane}
    v_xor_b32 v{t0}, v{t0}, v{t1}
    v_lshl_add_u32 v{vg}, v{t0}, 4, v{vg}
    s_lshl_b32 s{S_JT}, s{S_OB}, 2
    s_add_u32 s{S_JT}, s{S_JT}, s{S_W}
    s_mul_i32 s13, s{S_JT}, 14336
    s_lshl_b32 s{S_G}, s{S_PB}, 7
    s_mul_i32 s14, s{S_W}, {8*896}
    s_add_u32 s{S_G}, s{S_G}, s14
    s_lshl_b32 s14, s{S_W}, 10
    s_mov_b32 m0, s14
    s_waitcnt lgkmcnt(0)
    s_cmp_eq_u32 s{S_PART}, 0
    s_cselect_b32 s14, s32, s34
    s_cselect_b32 s15, s33, s35""")
    srd(k, 56, 14, 448 * 896); srd(k, 48, 44, WS_BYTES)
    for i in range(14):
        if i: k(f"s_add_u32 s{S_G}, s{S_G}, {32*896}\ns_add_u32 m0, m0, 4096")
        k(f"buffer_load_dwordx4 v{vg}, s[56:59], s{S_G} offen lds")
        if i and i % 4 == 0: k("s_add_u32 s13, s13, 4096")
        k(f"buffer_load_dwordx4 {v(QF+4*i,4)}, v{l16}, s[52:55], s13 offen offset:{1024*(i%4)}")
    k(f"""v_lshrrev_b32 v{t0}, 4, v{lane}
    v_bfe_u32 v{t1}, v{lane}, 2, 2
    v_lshl_add_u32 v{t0}, v{t0}, 3, v{t1}
    v_lshlrev_b32 v{va}, 7, v{t0}
    v_and_b32 v{t0}, 3, v{lane}
    v_lshl_add_u32 v{va}, v{t0}, 4, v{va}
    v_bfe_u32 v{t0}, v{lane}, 3, 1
    v_lshl_add_u32 v{va}, v{t0}, 6, v{va}      ; K=0 address
    v_xor_b32 v{va2}, 64, v{va}                ; K=1 address""")
    def lda(ks, base):
        for K in range(2):
            for mt in range(2):
                for u in range(2):
                    k(f"ds_read_b64_tr_b16 {v(base+8*K+4*mt+2*u,2)}, v{(va,va2)[K]} offset:{ks*4096+u*512+8*mt}")
    k("s_waitcnt vmcnt(0)\ns_barrier")
    lda(0, AF)
    for ks in range(14):
        if ks + 1 < 14:
            lda(ks + 1, AF + 16 * ((ks + 1) & 1)); k("s_waitcnt lgkmcnt(8)")
        else: k("s_waitcnt lgkmcnt(0)")
        for tl in range(4):
            d = ACC + 4 * tl
            c = "0" if ks == 0 else v(d, 4)
            k(f"v_mfma_f32_16x16x32_bf16 {v(d,4)}, {v(AF+16*(ks&1)+4*tl,4)}, {v(QF+4*ks,4)}, {c}")
    k(f"""s_lshl_b32 s13, s{S_OB}, 1
    s_lshr_b32 s14, s{S_W}, 1
    s_add_u32 s13, s13, s14
    s_mul_i32 s13, s13, 56
    s_mul_i32 s14, s{S_PART}, 28
    s_add_u32 s13, s13, s14
    s_lshl_b32 s14, s{S_PB}, 2
    s_add_u32 s13, s13, s14
    s_lshl_b32 s13, s13, 10
    s_and_b32 s14, s{S_W}, 1
    s_lshl_b32 s14, s14, 8
    s_add_u32 s13, s13, s14
    s_add_u32 s13, s13, {WC}
    v_and_b32 v{t0}, 15, v{lane}
    v_lshlrev_b32 v{t0}, 4, v{t0}
    v_bfe_u32 v{t1}, v{lane}, 4, 1
    v_lshl_add_u32 v{t0}, v{t1}, 9, v{t0}
    v_lshrrev_b32 v{t1}, 5, v{lane}
    v_lshl_add_u32 v{t0}, v{t1}, 10, v{t0}""")
    for K in range(2):
        for mt in range(2):
            d = ACC + 4 * (2 * K + mt)
            k(f"""v_cvt_pk_bf16_f32 v{20+4*K+2*mt}, v{d}, v{d+1}
            v_cvt_pk_bf16_f32 v{20+4*K+2*mt+1}, v{d+2}, v{d+3}""")
        k(f"buffer_store_dwordx4 {v(20+4*K,4)}, v{t0}, s[48:51], s13 offen offset:{2048*K}")
    k("s_endpgm")

def job_w(k):
    S_R, S_W, S_G = 4, 7, 9
    lane, l16, t0, t1, va, vo = 1, 2, 4, 5, 3, 6
    O = 20
    IMOFF = 15360
    k(f"s_sub_u32 s{S_R}, s2, {N_A+N_B+N_D+N_C}")
    wave_lane(k, S_W, lane, t0)
    k(f"""v_lshlrev_b32 v{l16}, 4, v{lane}
    s_mul_i32 s{S_G}, s{S_R}, 14400
    s_and_b32 s13, s{S_W}, 1
    s_lshl_b32 s13, s13, 13           ; (w&1)*8192
    s_add_u32 s{S_G}, s{S_G}, s13
    s_lshr_b32 s14, s{S_W}, 1
    s_mul_i32 s15, s14, {IMOFF}
    s_add_u32 s13, s13, s15
    s_mov_b32 m0, s13
    s_waitcnt lgkmcnt(0)
    s_cmp_eq_u32 s14, 0
    s_cselect_b32 s14, s18, s20
    s_cselect_b32 s15, s19, s21""")
    srd(k, 56, 14, 2048 * 450); srd(k, 48, 44, WS_BYTES)
    for i in range(7):
        if i == 4: k(f"s_add_u32 s{S_G}, s{S_G}, 4096\ns_add_u32 m0, m0, 4096")
        k(f"buffer_load_dwordx4 v{l16}, s[56:59], s{S_G} offen offset:{1024*(i%4)} lds")
    sk = k.label("w7")
    k(f"""s_bitcmp1_b32 s{S_W}, 0
    s_cbranch_scc1 {sk}
    buffer_load_dwordx4 v{l16}, s[56:59], s{S_G} offen offset:3072 lds
    {sk}:""")
    k(f"""v_and_b32 v{t0}, 7, v{lane}
    v_mul_u32_u24 v{va}, 1800, v{t0}
    v_lshrrev_b32 v{t1}, 3, v{lane}
    s_mul_i32 s13, s{S_W}, 56
    v_add_u32 v{t1}, s13, v{t1}          ; u for i=0
    v_lshlrev_b32 v{vo}, 13, v{t1}
    v_lshl_add_u32 v{vo}, v{t0}, 4, v{vo}
    v_lshl_add_u32 v{va}, v{t1}, 1, v{va}
    v_mov_b32 v{t0}, v{va}
    v_cmp_eq_u32 vcc, 0, v{t1}
    v_add_u32 v{t1}, 448, v{va}
    v_cndmask_b32 v{t0}, v{t0}, v{t1}, vcc
    s_lshl_b32 s13, s{S_R}, 7
    s_add_u32 s13, s13, {WT}
    s_waitcnt vmcnt(0)
    s_barrier""")
    H = 60
    def fin(i):
        for e in range(4):
            k(f"v_lshl_or_b32 v{O+4*i+e}, v{H+4*i+e}, 16, v{O+4*i+e}")
        k(f"buffer_store_dwordx4 {v(O+4*i,4)}, v{vo}, s[48:51], s13 offen")
        if i < 6: k("s_add_u32 s13, s13, 0x10000")
    for i in range(7):
        ad = t0 if i == 0 else va
        for e in range(4):
            k(f"""ds_read_u16 v{O+4*i+e}, v{ad} offset:{e*450+16*i}
            ds_read_u16 v{H+4*i+e}, v{ad} offset:{IMOFF+e*450+16*i}""")
        if i >= 1:
            k(f"s_waitcnt lgkmcnt(8)"); fin(i - 1)
    k(f"s_waitcnt lgkmcnt(0)"); fin(6)
    k("s_endpgm")

def build_k1():
    k = Kernel("k1")
    prologue_ptrs(k)
    lb, ld, lc, lw, lx = (k.label(x) for x in "bdcwx")
    k(f"""s_cmp_ge_u32 s2, {N_A}
    s_cbranch_scc1 {lb}""")
    job_a(k)
    k(f"{lb}:\ns_cmp_ge_u32 s2, {N_A+N_B}\ns_cbranch_scc1 {ld}")
    job_b(k)
    k(f"{ld}:\ns_cmp_ge_u32 s2, {N_A+N_B+N_D}\ns_cbranch_scc1 {lc}")
    job_d(k)
    k(f"{lc}:\ns_cmp_ge_u32 s2, {N_A+N_B+N_D+N_C}\ns_cbranch_scc1 {lw}")
    job_c(k)
    lr_ = k.label("r")
    k(f"{lw}:\ns_cmp_ge_u32 s2, {K1_GRID-N_R}\ns_cbranch_scc1 {lr_}")
    job_w(k)
    k(f"{lr_}:\ns_cmp_ge_u32 s2, {K1_GRID}\ns_cbranch_scc1 {lx}")
    import k2
    k2.repack_job(k, K1_GRID - N_R)
    k(f"{lx}:\ns_endpgm")
    return k, dict(grid=K1_GRID, lds=K1_LDS, nv=208, na=0, ns=72)
```

```python
from common import *
from k1 import wave_lane

K2_LDS = 8192 + 2 * 32 * 144
N_R = 28

def fft_table():
    lane = np.arange(64); n = lane & 15; g = lane >> 4
    def pack8(vals):
        b = np.array([[bf16bits(x) for x in row] for row in vals], np.uint32)
        return b[:, 0::2] | (b[:, 1::2] << 16)
    blocks = []
    for w in range(4):
        for ks in range(2):
            a_ = (16*w + n)[:, None]; b_ = (32*ks + 8*g)[:, None] + np.arange(8)[None, :]
            ang = 2*np.pi*((a_*b_) % 64)/64
            blocks.append(pack8(np.cos(ang))); blocks.append(pack8(np.sin(ang)))
        k1 = (16*w + n)[:, None]; n2 = (8*g)[:, None] + np.arange(8)[None, :]
        ang = 2*np.pi*(k1*n2)/2048
        t = np.concatenate([np.cos(ang), -np.sin(ang)], 1).astype(np.float32).view(np.uint32)
        for j in range(4): blocks.append(t[:, 4*j:4*j+4])
        tr = np.zeros((64, 8)); ti = np.zeros((64, 8))
        for nt in range(2):
            for i in range(4):
                n2 = 8*(n >> 2) + 4*nt + (n & 3); k1 = 16*w + 4*g + i
                ang = 2*np.pi*(k1*n2)/2048
                tr[:, 4*nt+i] = np.cos(ang)/2048; ti[:, 4*nt+i] = np.sin(ang)/2048
        t = np.concatenate([tr, ti], 1).astype(np.float32).view(np.uint32)
        for j in range(4): blocks.append(t[:, 4*j:4*j+4])
    for t_ in range(2):
        a_ = (8*(n >> 2) + 4*t_ + (n & 3))[:, None]; b_ = (8*g)[:, None] + np.arange(8)[None, :]
        ang = 2*np.pi*((a_*b_) % 32)/32
        blocks.append(pack8(np.cos(ang))); blocks.append(pack8(np.sin(ang)))
    d = np.concatenate([b.reshape(-1) for b in blocks]).astype(np.uint64)
    q = d[0::2] | (d[1::2] << np.uint64(32))
    L = [".p2align 8", ".type tab_fft,@object", "tab_fft:"]
    for i in range(0, len(q), 8):
        L.append(".quad " + ",".join("0x%x" % int(x) for x in q[i:i+8]))
    return "\n".join(L)

def cmul(k, orr, oi, dr, di, tr, ti):
    k(f"""v_mul_f32 v{orr}, v{dr}, v{tr}
    v_mul_f32 v{oi}, v{dr}, v{ti}
    v_fma_f32 v{orr}, -v{di}, v{ti}, v{orr}
    v_fmac_f32 v{oi}, v{di}, v{tr}""")

def conv_body(k):
    S_W, S_RE, S_IM, S_SM = 7, 8, 9, 12
    lane, l16, t0, t1, vx, vw, vq, vtr = 1, 2, 3, 4, 5, 6, 7, 8
    XR, XI = 12, 16
    SQ = 20
    WW = 28
    C64, S64, N64 = 36, 44, 52
    TF = 60
    TI = 76
    C32, S32, N32 = 92, 100, 108
    FR, FI = 116, 124
    AF = 132
    DR, DI = 164, 172
    T = 180
    PR, PI = 196, 200
    wave_lane(k, S_W, lane, t0)
    table_ptr(k, 10, "tab_fft")
    srd(k, 52, 10, 52 * 1024)
    k(f"""v_lshlrev_b32 v{l16}, 4, v{lane}
    s_mul_i32 s13, s{S_W}, {12*1024}
    s_add_u32 s14, s13, 4096
    s_add_u32 s15, s13, 8192
    s_lshl_b32 s{S_RE}, s2, 1
    s_add_u32 s{S_IM}, s{S_RE}, 1
    s_cmp_eq_u32 s2, 0
    s_cselect_b32 s{S_RE}, 1, s{S_RE}
    s_cselect_b32 s{S_IM}, 0, s{S_IM}
    s_cselect_b32 s{S_SM}, 0, 1.0
    s_lshl_b32 s{S_RE}, s{S_RE}, 12
    s_lshl_b32 s{S_IM}, s{S_IM}, 12
    v_and_b32 v{t0}, 15, v{lane}
    v_lshrrev_b32 v{t1}, 4, v{lane}
    s_lshl_b32 s18, s{S_W}, 4
    v_add_u32 v{t0}, s18, v{t0}            ; n1 = 16w+n
    v_lshlrev_b32 v{vx}, 6, v{t0}
    v_lshl_add_u32 v{vx}, v{t1}, 4, v{vx}
    v_lshlrev_b32 v{vq}, 1, v{vx}
    v_lshlrev_b32 v{vw}, 2, v{t0}
    v_lshl_add_u32 v{vw}, v{t1}, 11, v{vw}
    s_lshl_b32 s18, s2, 13
    s_add_u32 s18, s18, {WT}
    s_add_u32 s16, s4, s{S_RE}
    s_add_u32 s17, s4, s{S_IM}
    s_waitcnt lgkmcnt(0)""")
    k.mark(0)
    srd(k, 48, 44, WS_BYTES)
    k(f"""buffer_load_dwordx4 {v(XR,4)}, v{vx}, s[48:51], s16 offen
    buffer_load_dwordx4 {v(XI,4)}, v{vx}, s[48:51], s17 offen
    buffer_load_dwordx4 {v(SQ,4)}, v{vq}, s[48:51], s5 offen
    buffer_load_dwordx4 {v(SQ+4,4)}, v{vq}, s[48:51], s5 offen offset:16""")
    for ks in range(2):
        k(f"buffer_load_dwordx4 {v(C64+4*ks,4)}, v{l16}, s[52:55], s13 offen offset:{2048*ks}")
        k(f"buffer_load_dwordx4 {v(S64+4*ks,4)}, v{l16}, s[52:55], s13 offen offset:{2048*ks+1024}")
    for j in range(4): k(f"buffer_load_dwordx4 {v(TF+4*j,4)}, v{l16}, s[52:55], s14 offen offset:{1024*j}")
    k("s_mov_b32 s13, 0xc000")
    for t_ in range(2):
        k(f"buffer_load_dwordx4 {v(C32+4*t_,4)}, v{l16}, s[52:55], s13 offen offset:{2048*t_}")
        k(f"buffer_load_dwordx4 {v(S32+4*t_,4)}, v{l16}, s[52:55], s13 offen offset:{2048*t_+1024}")
    for e in range(8): k(f"buffer_load_dword v{WW+e}, v{vw}, s[48:51], s18 offen offset:{256*e}")
    for j in range(4): k(f"buffer_load_dwordx4 {v(TI+4*j,4)}, v{l16}, s[52:55], s15 offen offset:{1024*j}")
    k(f"""v_lshrrev_b32 v{t0}, 4, v{lane}
    v_bfe_u32 v{t1}, v{lane}, 2, 2
    v_lshl_add_u32 v{t0}, v{t0}, 3, v{t1}
    v_lshlrev_b32 v{vtr}, 6, v{t0}
    v_and_b32 v{t0}, 3, v{lane}
    v_lshl_add_u32 v{vtr}, v{t0}, 4, v{vtr}
    v_mov_b32 v{t1}, {fhex(1e-5)}
    s_mov_b32 s19, {fhex(1/448)}
    s_waitcnt vmcnt(24)""")
    k.mark(1)
    for e in range(8):
        k(f"v_fma_f32 v{SQ+e}, v{SQ+e}, s19, v{t1}")
    for e in range(8):
        k(f"v_rsq_f32 v{SQ+e}, v{SQ+e}")
    for j in range(4):
        k(f"""v_lshlrev_b32 v{FR+2*j}, 16, v{XR+j}
        v_and_b32 v{FR+2*j+1}, 0xffff0000, v{XR+j}
        v_lshlrev_b32 v{FI+2*j}, 16, v{XI+j}
        v_and_b32 v{FI+2*j+1}, 0xffff0000, v{XI+j}""")
    for e in range(8):
        k(f"""v_mul_f32 v{T+e}, v{FR+e}, v{SQ+e}
        v_mul_f32 v{SQ+e}, s{S_SM}, v{SQ+e}""")
    for j in range(4): k(f"v_cvt_pk_bf16_f32 v{PR+j}, v{T+2*j}, v{T+2*j+1}")
    k(f"ds_write_b128 v{vx}, {v(PR,4)}")
    for e in range(8): k(f"v_mul_f32 v{T+8+e}, v{FI+e}, v{SQ+e}")
    for j in range(4): k(f"v_cvt_pk_bf16_f32 v{PI+j}, v{T+8+2*j}, v{T+8+2*j+1}")
    k(f"ds_write_b128 v{vx}, {v(PI,4)} offset:4096")
    k("s_waitcnt vmcnt(20)")
    for j in range(8): k(f"v_xor_b32 v{N64+j}, 0x80008000, v{S64+j}")
    k("s_waitcnt lgkmcnt(0)\ns_barrier")
    k.mark(2)
    for ks in range(2):
        for mt in range(2):
            for pl in range(2):
                for u in range(2):
                    k(f"ds_read_b64_tr_b16 {v(AF+16*pl+8*mt+4*ks+2*u,2)}, v{vtr} offset:{4096*pl+2048*ks+256*u+8*mt}")
    def A(pl, mt, ks): return v(AF+16*pl+8*mt+4*ks, 4)
    mf = "v_mfma_f32_16x16x32_bf16"
    for ks in range(2):
        k(f"s_waitcnt lgkmcnt({8*(1-ks)})")
        for mt in range(2):
            k(f"{mf} {v(DR+4*mt,4)}, {A(0,mt,ks)}, {v(C64+4*ks,4)}, {'0' if ks==0 else v(DR+4*mt,4)}")
            k(f"{mf} {v(DI+4*mt,4)}, {A(1,mt,ks)}, {v(C64+4*ks,4)}, {'0' if ks==0 else v(DI+4*mt,4)}")
        for mt in range(2):
            k(f"{mf} {v(DR+4*mt,4)}, {A(1,mt,ks)}, {v(S64+4*ks,4)}, {v(DR+4*mt,4)}")
            k(f"{mf} {v(DI+4*mt,4)}, {A(0,mt,ks)}, {v(N64+4*ks,4)}, {v(DI+4*mt,4)}")
    k("s_waitcnt vmcnt(12)")
    for j in range(8): k(f"v_xor_b32 v{N32+j}, 0x80008000, v{S32+j}")
    k.mark(3)
    for e in range(8): cmul(k, T+e, T+8+e, DR+e, DI+e, TF+e, TF+8+e)
    for j in range(4):
        k(f"v_cvt_pk_bf16_f32 v{PR+j}, v{T+2*j}, v{T+2*j+1}\nv_cvt_pk_bf16_f32 v{PI+j}, v{T+8+2*j}, v{T+8+2*j+1}")
    for mt in range(2):
        k(f"{mf} {v(DR+4*mt,4)}, {v(C32+4*mt,4)}, {v(PR,4)}, 0")
        k(f"{mf} {v(DI+4*mt,4)}, {v(C32+4*mt,4)}, {v(PI,4)}, 0")
    for mt in range(2):
        k(f"{mf} {v(DR+4*mt,4)}, {v(S32+4*mt,4)}, {v(PI,4)}, {v(DR+4*mt,4)}")
        k(f"{mf} {v(DI+4*mt,4)}, {v(N32+4*mt,4)}, {v(PR,4)}, {v(DI+4*mt,4)}")
    k("s_waitcnt vmcnt(4)")
    for e in range(8):
        k(f"v_lshlrev_b32 v{TF+e}, 16, v{WW+e}\nv_and_b32 v{TF+8+e}, 0xffff0000, v{WW+e}")
    for e in range(8): cmul(k, T+e, T+8+e, DR+e, DI+e, TF+e, TF+8+e)
    for j in range(4):
        k(f"v_cvt_pk_bf16_f32 v{PR+j}, v{T+2*j}, v{T+2*j+1}\nv_cvt_pk_bf16_f32 v{PI+j}, v{T+8+2*j}, v{T+8+2*j+1}")
    for nt in range(2):
        k(f"{mf} {v(DR+4*nt,4)}, {v(PR,4)}, {v(C32+4*nt,4)}, 0")
        k(f"{mf} {v(DI+4*nt,4)}, {v(PI,4)}, {v(C32+4*nt,4)}, 0")
    for nt in range(2):
        k(f"{mf} {v(DR+4*nt,4)}, {v(PI,4)}, {v(N32+4*nt,4)}, {v(DR+4*nt,4)}")
        k(f"{mf} {v(DI+4*nt,4)}, {v(PR,4)}, {v(S32+4*nt,4)}, {v(DI+4*nt,4)}")
    vw2, vr2 = vw, vq
    k(f"""v_bfe_u32 v{t0}, v{lane}, 2, 2
    v_and_b32 v{t1}, 3, v{lane}
    v_lshl_add_u32 v{t0}, v{t0}, 3, v{t1}
    v_mul_u32_u24 v{t0}, 144, v{t0}
    v_lshrrev_b32 v{t1}, 4, v{lane}
    v_lshl_add_u32 v{vr2}, v{t1}, 4, v{t0}
    v_lshl_add_u32 v{vw2}, v{t1}, 3, v{t0}
    s_lshl_b32 s13, s{S_W}, 5
    v_add_u32 v{vw2}, s13, v{vw2}
    s_waitcnt vmcnt(0)""")
    k.mark(4)
    IM2 = 32 * 144
    for e in range(8): cmul(k, T+e, T+8+e, DR+e, DI+e, TI+e, TI+8+e)
    for j in range(4):
        k(f"v_cvt_pk_bf16_f32 v{PR+j}, v{T+2*j}, v{T+2*j+1}\nv_cvt_pk_bf16_f32 v{PI+j}, v{T+8+2*j}, v{T+8+2*j+1}")
    for nt in range(2):
        k(f"ds_write_b64 v{vw2}, {v(PR+2*nt,2)} offset:{8192+nt*4*144}")
        k(f"ds_write_b64 v{vw2}, {v(PI+2*nt,2)} offset:{8192+IM2+nt*4*144}")
    k("s_waitcnt lgkmcnt(0)\ns_barrier")
    for ks in range(2):
        for mt in range(2):
            for pl in range(2):
                k(f"ds_read_b128 {A(pl,mt,ks)}, v{vr2} offset:{8192+IM2*pl+mt*4*144+64*ks}")
    for ks in range(2):
        k(f"s_waitcnt lgkmcnt({4*(1-ks)})")
        for mt in range(2):
            k(f"{mf} {v(DR+4*mt,4)}, {A(0,mt,ks)}, {v(C64+4*ks,4)}, {'0' if ks==0 else v(DR+4*mt,4)}")
            k(f"{mf} {v(DI+4*mt,4)}, {A(1,mt,ks)}, {v(C64+4*ks,4)}, {'0' if ks==0 else v(DI+4*mt,4)}")
        for mt in range(2):
            k(f"{mf} {v(DR+4*mt,4)}, {A(1,mt,ks)}, {v(N64+4*ks,4)}, {v(DR+4*mt,4)}")
            k(f"{mf} {v(DI+4*mt,4)}, {A(0,mt,ks)}, {v(S64+4*ks,4)}, {v(DI+4*mt,4)}")
    k.mark(5)
    k(f"s_add_u32 s16, s6, s{S_RE}\ns_add_u32 s17, s6, s{S_IM}")
    for e in range(8): k(f"v_add_f32 v{FR+e}, v{FR+e}, v{DR+e}")
    for j in range(4): k(f"v_cvt_pk_bf16_f32 v{PR+j}, v{FR+2*j}, v{FR+2*j+1}")
    k(f"buffer_store_dwordx4 {v(PR,4)}, v{vx}, s[48:51], s16 offen")
    for e in range(8): k(f"v_fmac_f32 v{FI+e}, s{S_SM}, v{DI+e}")
    for j in range(4): k(f"v_cvt_pk_bf16_f32 v{PI+j}, v{FI+2*j}, v{FI+2*j+1}")
    k(f"buffer_store_dwordx4 {v(PI,4)}, v{vx}, s[48:51], s17 offen")
    k("s_endpgm")

def repack_job(k, first=224):
    lane, l16, t0, t1, vc = 1, 2, 3, 4, 5
    k(f"""s_sub_u32 s4, s2, {first}""")
    wave_lane(k, 7, lane, t0)
    k(f"""v_lshlrev_b32 v{l16}, 4, v{lane}
    s_lshr_b32 s5, s4, 1           ; js*2+nh
    s_and_b32 s6, s4, 1            ; part
    s_lshl_b32 s8, s5, 5
    v_and_b32 v{t0}, 31, v{lane}
    v_add_u32 v{t0}, s8, v{t0}
    v_mul_u32_u24 v{vc}, 896, v{t0}
    v_lshrrev_b32 v{t1}, 5, v{lane}
    v_lshl_add_u32 v{vc}, v{t1}, 4, v{vc}
    s_mul_i32 s8, s7, {7*32}
    s_mul_i32 s9, s4, 28
    s_mul_i32 s12, s7, 7
    s_add_u32 s9, s9, s12
    s_lshl_b32 s9, s9, 10
    s_add_u32 s9, s9, {WC7}
    s_waitcnt lgkmcnt(0)
    s_cmp_eq_u32 s6, 0
    s_cselect_b32 s14, s32, s34
    s_cselect_b32 s15, s33, s35""")
    srd(k, 56, 14, 448 * 896); srd(k, 48, 44, WS_BYTES)
    for i in range(7): k(f"buffer_load_dwordx4 {v(8+4*i,4)}, v{vc}, s[56:59], s8 offen offset:{32*i}")
    for i in range(7):
        if i == 4: k("s_add_u32 s9, s9, 4096")
        k(f"s_waitcnt vmcnt(6)\nbuffer_store_dwordx4 {v(8+4*i,4)}, v{l16}, s[48:51], s9 offen offset:{1024*(i%4)} sc1")
    k("s_endpgm")

def build_k2():
    k = Kernel("k2")
    lr, lx = k.label("r"), k.label("x")
    k(f"""s_load_dwordx2 s[44:45], s[0:1], 112
    s_cmp_ge_u32 s2, 224
    s_cbranch_scc1 {lr}
    s_mov_b32 s4, {X0T}
    s_mov_b32 s5, {SSQ0}
    s_mov_b32 s6, {X1T}
    L_conv_body:""")
    conv_body(k)
    k(f"{lr}:\ns_cmp_ge_u32 s2, {224+N_R}\ns_cbranch_scc1 {lx}")
    repack_job(k)
    k(f"{lx}:\ns_endpgm")
    k5 = Kernel("k5")
    k5(f"""s_load_dwordx2 s[44:45], s[0:1], 112
    s_cmp_ge_u32 s2, 224
    s_cbranch_scc1 L_k5_x
    s_mov_b32 s4, {X2T}
    s_mov_b32 s5, {SSQ2}
    s_mov_b32 s6, {X3T}
    s_branch L_conv_body
    L_k5_x:
    s_endpgm""")
    info = dict(lds=K2_LDS, nv=204, na=0, ns=64)
    return (k, dict(grid=224 + N_R, **info)), (k5, dict(grid=224, **info))
```

```python
from common import *
from k1 import wave_lane
from k3 import cmad, csq, cmul
import os

E_BYTES = 32 * 448 * 16
L_XCH = 114688
L_STASH = L_XCH + 16384
L_RS = L_STASH + 16384
L_RED = L_RS + 256
L_FLG = L_RED + 512
KP_LDS = L_FLG + 16
IM2 = 32 * 144
MF16 = "v_mfma_f32_16x16x32_bf16"
MF32 = "v_mfma_f32_32x32x16_bf16"
_MK = dict((x.split(":")[0], int(x.split(":")[1])) for x in os.environ.get("MARKS", "ka:0,pro:1,ln0:2,poll30:3,g10:4,epub0:5,lb0:6").split(","))
def mk(k, name):
    if name in _MK: k.mark(_MK[name])
POLL_MAX = 20000
RETRY_MAX = 40

lane, l16, vx, vtr, vw2, vr2 = 1, 2, 3, 4, 5, 6
vdma3, va0, va1, vag, vp16, vq, vn4, vst3, vpoll3 = 7, 8, 9, 10, 11, 12, 13, 14, 15
vdma4, vb0, vb1, vst4, vpoll4, vxres, vsp = 16, 17, 18, 19, 20, 21, 22
vcolm = 23
EO = 24
lr, li, p16r, p16i, Lr, Li, pqr, pqi, pLr, pLi, dsk = range(32, 43)
vgm, vrsw, vstw, vstr, vout = 43, 44, 45, 46, 47
TB = 48
S_W, S_C, S_J, S_KH, S_NH = 7, 12, 13, 15, 16
S_RE, S_IM, S_SM, S_C128, S_RETRY, S_POLL = 68, 69, 70, 71, 72, 73
S_BB = 28
A_W = 0; A_X = 112; A_C64, A_S64, A_N64, A_C32, A_S32, A_N32 = 168, 176, 184, 192, 200, 208
A_TF, A_TI, A_WW = 216, 232, 248

def bload(ks, part):
    return f"buffer_load_dwordx4 {a(A_W+8*ks+4*part,4)}, v{l16}, s[48:51], s{S_BB+4*part+ks//4} offen offset:{1024*(ks%4)}"
B_LOADS = [bload(ks, part) for ks in range(14) for part in range(2)]

def poll(k, vaddr, soff, nl, tmp):
    lp, lx = k.label("poll"), k.label("pollx")
    lo, hi = ((1 << nl) - 1) & 0xffffffff, ((1 << nl) - 1) >> 32
    k(f"""s_mov_b32 exec_lo, {lo:#x}
    s_mov_b32 exec_hi, {hi:#x}
    s_mov_b32 s{S_POLL}, {POLL_MAX}
    {lp}:
    buffer_load_dword v{tmp}, v{vaddr}, s[48:51], s{soff} offen sc1
    s_waitcnt vmcnt(0)
    v_cmp_eq_u32 vcc, -1, v{tmp}
    s_sub_u32 s{S_POLL}, s{S_POLL}, 1
    s_cbranch_vccz {lx}
    s_cmp_lg_u32 s{S_POLL}, 0
    s_cbranch_scc1 {lp}
    {lx}:
    s_mov_b64 exec, -1""")

def setup_conv(k):
    t0, t1 = TB, TB + 1
    k(f"""v_lshlrev_b32 v{l16}, 4, v{lane}
    s_lshl_b32 s{S_RE}, s2, 1
    s_add_u32 s{S_IM}, s{S_RE}, 1
    s_cmp_eq_u32 s2, 0
    s_cselect_b32 s{S_RE}, 1, s{S_RE}
    s_cselect_b32 s{S_IM}, 0, s{S_IM}
    s_cselect_b32 s{S_SM}, 0, 1.0
    s_lshl_b32 s{S_RE}, s{S_RE}, 12
    s_lshl_b32 s{S_IM}, s{S_IM}, 12
    v_and_b32 v{t0}, 15, v{lane}
    v_lshrrev_b32 v{vq}, 4, v{lane}
    s_lshl_b32 s18, s{S_W}, 4
    v_add_u32 v{t0}, s18, v{t0}
    v_lshlrev_b32 v{vx}, 6, v{t0}
    v_lshl_add_u32 v{vx}, v{vq}, 4, v{vx}
    v_lshlrev_b32 v{t1}, 2, v{t0}
    v_lshl_add_u32 v{t1}, v{vq}, 11, v{t1}""")
    return t1

def setup_rest(k):
    t0, t1, t2, vn, vp = TB + 2, TB + 3, TB + 4, TB + 5, TB + 6
    k(f"""v_bfe_u32 v{t1}, v{lane}, 2, 2
    v_lshl_add_u32 v{t0}, v{vq}, 3, v{t1}        ; 8g + r
    v_lshlrev_b32 v{vtr}, 6, v{t0}
    v_lshlrev_b32 v{va0}, 7, v{t0}
    v_and_b32 v{t0}, 3, v{lane}
    v_lshl_add_u32 v{vtr}, v{t0}, 4, v{vtr}
    v_lshl_add_u32 v{t2}, v{t1}, 3, v{t0}        ; 8(n>>2) + (n&3)
    v_mul_u32_u24 v{t2}, 144, v{t2}
    v_lshl_add_u32 v{vr2}, v{vq}, 4, v{t2}
    v_lshl_add_u32 v{vw2}, v{vq}, 3, v{t2}
    s_lshl_b32 s14, s{S_W}, 5
    v_add_u32 v{vw2}, s14, v{vw2}
    v_lshlrev_b32 v{t0}, 1, v{t0}
    v_bfe_u32 v{t1}, v{lane}, 3, 1
    v_xor_b32 v{t0}, v{t0}, v{t1}
    v_lshl_add_u32 v{va0}, v{t0}, 4, v{va0}
    v_xor_b32 v{va1}, 16, v{va0}
    s_lshr_b32 s{S_KH}, s{S_W}, 1
    s_and_b32 s{S_NH}, s{S_W}, 1
    s_lshl_b32 s14, s{S_KH}, 4
    v_xor_b32 v{vag}, s14, v{va0}
    s_lshl_b32 s14, s{S_NH}, 3
    v_add_u32 v{vag}, s14, v{vag}
    v_lshrrev_b32 v{t0}, 3, v{lane}
    v_lshlrev_b32 v{t0}, 12, v{t0}
    v_and_b32 v{t1}, 1, v{vq}
    v_and_b32 v{t2}, 7, v{lane}
    v_xor_b32 v{vdma3}, v{t1}, v{t2}
    v_lshl_add_u32 v{vdma3}, v{vdma3}, 4, v{t0}
    v_lshlrev_b32 v{t1}, 2, v{t1}
    v_xor_b32 v{vdma4}, v{t1}, v{t2}
    v_lshl_add_u32 v{vdma4}, v{vdma4}, 4, v{t0}
    ; p
    v_and_b32 v{vn}, 15, v{lane}
    s_lshl_b32 s17, s{S_J}, 2
    s_add_u32 s17, s17, s{S_W}                 ; pt
    s_lshl_b32 s14, s17, 4
    v_add_u32 v{vp}, s14, v{vn}
    v_lshlrev_b32 v{vp16}, 4, v{vp}
    v_lshlrev_b32 v{vn4}, 2, v{vn}
    v_lshlrev_b32 v{vst3}, 12, v{vp}
    v_lshl_add_u32 v{vst3}, v{vq}, 4, v{vst3}
    s_lshl_b32 s{S_C128}, s{S_C}, 7
    s_mul_i32 s{S_BB}, s17, {28*1024}
    s_add_u32 s{S_BB}, s{S_BB}, {WBB}""")
    for i in range(1, 4): k(f"s_add_u32 s{S_BB+i}, s{S_BB}, {4096*i}")
    for i in range(4): k(f"s_add_u32 s{S_BB+4+i}, s{S_BB}, {14336+4096*i}")
    k(f"""s_mul_i32 s11, s17, 14336
    v_lshrrev_b32 v{t0}, 2, v{lane}
    v_and_b32 v{t1}, 3, v{lane}
    v_lshl_add_u32 v{t0}, v{t0}, 4, v{t1}
    s_lshl_b32 s14, s{S_W}, 2
    v_add_u32 v{t0}, s14, v{t0}
    v_lshlrev_b32 v{t0}, 13, v{t0}
    v_add_u32 v{vpoll3}, {4096+124}, v{t0}
    v_bfe_u32 v{t1}, v{vp}, 1, 1
    v_lshlrev_b32 v{t2}, 1, v{vq}
    v_xor_b32 v{t1}, v{t1}, v{t2}
    v_lshlrev_b32 v{t1}, 4, v{t1}
    v_lshl_add_u32 v{vxres}, v{vp}, 7, v{t1}
    s_sub_u32 s14, s{S_C}, 1
    s_mul_i32 s14, s14, 7168
    v_mul_u32_u24 v{t0}, {8*7168}, v{vq}
    v_sub_u32 v{t1}, v{vp16}, v{t0}
    v_add_u32 v{EO}, s14, v{t1}""")
    for r in range(1, 8): k(f"v_subrev_u32 v{EO+r}, 7168, v{EO+r-1}")
    k(f"""v_mov_b32 v{vgm}, -1
    v_mov_b32 v{t1}, 0xffff0000
    v_cmp_gt_u32 vcc, 16, v{lane}
    v_cndmask_b32 v{vgm}, v{vgm}, v{t1}, vcc
    v_and_b32 v{t0}, 3, v{lane}
    v_lshrrev_b32 v{t1}, 2, v{vn}
    v_lshl_add_u32 v{t2}, v{t1}, 4, v{t0}
    s_lshl_b32 s14, s{S_W}, 2
    v_add_u32 v{t2}, s14, v{t2}
    v_lshlrev_b32 v{t2}, 2, v{t2}
    v_add_u32 v{vrsw}, {L_RS}, v{t2}
    v_cmp_eq_u32 s[8:9], v{t1}, v{vq}
    s_lshl_b32 s14, s{S_W}, 8
    s_add_u32 s14, s14, {L_STASH}
    v_lshlrev_b32 v{t0}, 10, v{vq}
    v_lshl_add_u32 v{t0}, v{vn}, 4, v{t0}
    v_add_u32 v{vstw}, s14, v{t0}
    v_lshrrev_b32 v{t0}, 5, v{lane}
    v_and_b32 v{t1}, 31, v{lane}
    v_lshlrev_b32 v{t2}, 10, v{t0}
    v_lshl_add_u32 v{t2}, v{t1}, 4, v{t2}
    s_lshl_b32 s14, s{S_KH}, 11
    s_lshl_b32 s17, s{S_NH}, 9
    s_add_u32 s14, s14, s17
    s_add_u32 s14, s14, {L_STASH}
    v_add_u32 v{vstr}, s14, v{t2}
    s_lshl_b32 s14, s{S_J}, 1
    s_add_u32 s14, s14, s{S_NH}
    s_lshl_b32 s17, s14, 5
    v_add_u32 v{t1}, s17, v{t1}
    v_cmp_ne_u32 vcc, 0, v{t1}
    v_cndmask_b32 v{vcolm}, 0, 1.0, vcc
    v_mul_u32_u24 v{t2}, {16*1792}, v{t0}
    v_lshl_add_u32 v{vout}, v{t1}, 2, v{t2}
    s_lshl_b32 s10, s14, 1
    s_add_u32 s10, s10, s{S_KH}
    s_mul_i32 s10, s10, {28*1024}
    v_add_u32 v{t1}, s17, v{vn}
    v_lshlrev_b32 v{vst4}, 12, v{t1}
    v_lshl_add_u32 v{vst4}, v{vq}, 4, v{vst4}
    s_lshl_b32 s14, s{S_KH}, 6
    v_add_u32 v{vst4}, s14, v{vst4}
    v_bfe_u32 v{t1}, v{lane}, 2, 2
    v_lshl_add_u32 v{t0}, v{t0}, 3, v{t1}
    v_lshlrev_b32 v{vb0}, 7, v{t0}
    v_and_b32 v{t0}, 1, v{lane}
    v_lshlrev_b32 v{t0}, 1, v{t0}
    v_and_b32 v{t1}, 1, v{vq}
    v_add_u32 v{t0}, v{t0}, v{t1}
    v_bfe_u32 v{t1}, v{lane}, 3, 1
    v_lshl_add_u32 v{t0}, v{t1}, 2, v{t0}
    v_lshl_add_u32 v{vb0}, v{t0}, 4, v{vb0}
    v_bfe_u32 v{t1}, v{lane}, 1, 1
    v_lshl_add_u32 v{vb0}, v{t1}, 3, v{vb0}
    v_xor_b32 v{vb0}, s14, v{vb0}
    s_mul_i32 s14, s{S_KH}, 57344
    v_add_u32 v{vb0}, s14, v{vb0}
    v_xor_b32 v{vb1}, 64, v{vb0}
    s_mul_i32 s14, s{S_KH}, 448
    s_lshl_b32 s17, s{S_NH}, 3
    s_add_u32 s14, s14, s17
    s_add_u32 s14, s14, 7
    s_lshl_b32 s14, s14, 12
    s_add_u32 s14, s14, 124
    v_lshlrev_b32 v{t0}, 16, v{lane}
    v_add_u32 v{vpoll4}, s14, v{t0}
    v_bfe_u32 v{t0}, v{lane}, 1, 4
    v_lshrrev_b32 v{t1}, 5, v{lane}
    v_lshl_add_u32 v{t0}, v{t1}, 4, v{t0}
    s_lshl_b32 s14, s{S_KH}, 7
    s_lshl_b32 s17, s{S_NH}, 8
    s_add_u32 s14, s14, s17
    s_add_u32 s14, s14, {L_RED}
    v_lshl_add_u32 v{vsp}, v{t0}, 2, s14""")
    return vp

def lam_setup(k, lre, lim, ldt):
    t0, t1, TT = TB + 2, TB + 3, TB + 4
    emit_lam(k, lre, lim, ldt, lr, li, t0, t1)
    k(f"v_lshlrev_b32 v{dsk}, 16, v{dsk}")
    A0, A1, B0, B1, C0, C1 = range(TT, TT + 6)
    csq(k, A0, A1, lr, li); csq(k, B0, B1, A0, A1); csq(k, A0, A1, B0, B1); csq(k, p16r, p16i, A0, A1)
    csq(k, A0, A1, p16r, p16i); cmul(k, B0, B1, A0, A1, p16r, p16i); csq(k, Lr, Li, A0, A1)
    def sel4(outr, outi, r1, i1, r2, i2, r3, i3):
        k(f"v_mov_b32 v{outr}, 1.0\nv_mov_b32 v{outi}, 0")
        for q, (r, i) in enumerate(((r1, i1), (r2, i2), (r3, i3)), 1):
            k(f"""v_cmp_eq_u32 vcc, {q}, v{vq}
            v_cndmask_b32 v{outr}, v{outr}, v{r}, vcc
            v_cndmask_b32 v{outi}, v{outi}, v{i}, vcc""")
    sel4(pqr, pqi, p16r, p16i, A0, A1, B0, B1)
    csq(k, A0, A1, Lr, Li); csq(k, B0, B1, A0, A1); csq(k, A0, A1, B0, B1)
    csq(k, B0, B1, A0, A1); cmul(k, C0, C1, A0, A1, B0, B1)
    sel4(pLr, pLi, A0, A1, B0, B1, C0, C1)

XR, XI, SP = 64, 68, 72
SQ = 100; FR, FI = 108, 116; T = 124; PR, PI = 140, 144; AFc = 148; DR, DI = 180, 188; TF, TI = 196, 212

def conv_loads(k, layer):
    xin, sp = (X0T, SP0) if layer == 0 else (X2T, SP2)
    fl = "" if layer == 0 else " sc1"
    k(f"""s_add_u32 s17, s{S_RE}, {xin}
    s_add_u32 s18, s{S_IM}, {xin}
    buffer_load_dwordx4 {v(XR,4)}, v{vx}, s[48:51], s17 offen{fl}
    buffer_load_dwordx4 {v(XI,4)}, v{vx}, s[48:51], s18 offen{fl}""")
    for j in range(7):
        k(f"s_mov_b32 s19, {sp+4096*j}\nbuffer_load_dwordx4 {v(SP+4*j,4)}, v{vx}, s[48:51], s19 offen{fl}")

def cmul2(k, orr, oi, dr, di, tr, ti):
    k(f"""v_mul_f32 v{orr}, v{dr}, v{tr}
    v_mul_f32 v{oi}, v{dr}, v{ti}
    v_fma_f32 v{orr}, -v{di}, v{ti}, v{orr}
    v_fmac_f32 v{oi}, v{di}, v{tr}""")

def conv_compute(k, layer, fillers):
    xout = X1T if layer == 0 else X3T
    prev = k.capture()
    k(f"s_mov_b32 s17, 0x00003f80\ns_mov_b32 s18, 0x3f800000\ns_mov_b32 s19, {fhex(1/448)}")
    for j in range(7):
        for r in range(4):
            c0 = "0" if j == 0 else f"v{SQ+2*r}"; c1 = "0" if j == 0 else f"v{SQ+2*r+1}"
            k(f"v_dot2_f32_bf16 v{SQ+2*r}, v{SP+4*j+r}, s17, {c0}\nv_dot2_f32_bf16 v{SQ+2*r+1}, v{SP+4*j+r}, s18, {c1}")
    k(f"v_mov_b32 v{T}, {fhex(1e-5)}")
    for j in range(4):
        k(f"""v_lshlrev_b32 v{FR+2*j}, 16, v{XR+j}
        v_and_b32 v{FR+2*j+1}, 0xffff0000, v{XR+j}""")
    for e in range(8): k(f"v_fma_f32 v{SQ+e}, v{SQ+e}, s19, v{T}")
    for e in range(8): k(f"v_rsq_f32 v{SQ+e}, v{SQ+e}")
    for j in range(4):
        k(f"""v_lshlrev_b32 v{FI+2*j}, 16, v{XI+j}
        v_and_b32 v{FI+2*j+1}, 0xffff0000, v{XI+j}""")
    for e in range(8): k(f"v_mul_f32 v{T+e}, v{FR+e}, v{SQ+e}")
    for j in range(4): k(f"v_cvt_pk_bf16_f32 v{PR+j}, v{T+2*j}, v{T+2*j+1}")
    k(f"ds_write_b128 v{vx}, {v(PR,4)}")
    for e in range(8): k(f"v_mul_f32 v{SQ+e}, s{S_SM}, v{SQ+e}")
    for e in range(8): k(f"v_mul_f32 v{T+8+e}, v{FI+e}, v{SQ+e}")
    for j in range(4): k(f"v_cvt_pk_bf16_f32 v{PI+j}, v{T+8+2*j}, v{T+8+2*j+1}")
    k(f"ds_write_b128 v{vx}, {v(PI,4)} offset:4096")
    k("s_waitcnt lgkmcnt(0)\ns_barrier")
    mk(k, f"ln{layer}")
    def A(pl, mt, ks): return v(AFc+16*pl+8*mt+4*ks, 4)
    for ks in range(2):
        for mt in range(2):
            for pl in range(2):
                for u in range(2):
                    k(f"ds_read_b64_tr_b16 {v(AFc+16*pl+8*mt+4*ks+2*u,2)}, v{vtr} offset:{4096*pl+2048*ks+256*u+8*mt}")
    for e in range(16): k(f"v_accvgpr_read_b32 v{TF+e}, a{A_TF+e}")
    def big(S1, S2):
        for ks in range(2):
            for mt in range(2):
                k(f"{MF16} {v(DR+4*mt,4)}, {A(0,mt,ks)}, {a(A_C64+4*ks,4)}, {'0' if ks==0 else v(DR+4*mt,4)}")
                k(f"{MF16} {v(DI+4*mt,4)}, {A(1,mt,ks)}, {a(A_C64+4*ks,4)}, {'0' if ks==0 else v(DI+4*mt,4)}")
            for mt in range(2):
                k(f"{MF16} {v(DR+4*mt,4)}, {A(1,mt,ks)}, {a(S1+4*ks,4)}, {v(DR+4*mt,4)}")
                k(f"{MF16} {v(DI+4*mt,4)}, {A(0,mt,ks)}, {a(S2+4*ks,4)}, {v(DI+4*mt,4)}")
    def twid(tw):
        for e in range(8): cmul2(k, T+e, T+8+e, DR+e, DI+e, tw+e, tw+8+e)
        for j in range(4):
            k(f"v_cvt_pk_bf16_f32 v{PR+j}, v{T+2*j}, v{T+2*j+1}\nv_cvt_pk_bf16_f32 v{PI+j}, v{T+8+2*j}, v{T+8+2*j+1}")
    big(A_S64, A_N64)
    for e in range(16): k(f"v_accvgpr_read_b32 v{TI+e}, a{A_TI+e}")
    twid(TF)
    for mt in range(2):
        k(f"{MF16} {v(DR+4*mt,4)}, {a(A_C32+4*mt,4)}, {v(PR,4)}, 0\n{MF16} {v(DI+4*mt,4)}, {a(A_C32+4*mt,4)}, {v(PI,4)}, 0")
    for mt in range(2):
        k(f"{MF16} {v(DR+4*mt,4)}, {a(A_S32+4*mt,4)}, {v(PI,4)}, {v(DR+4*mt,4)}\n{MF16} {v(DI+4*mt,4)}, {a(A_N32+4*mt,4)}, {v(PR,4)}, {v(DI+4*mt,4)}")
    for e in range(8): k(f"v_accvgpr_read_b32 v{TF+8+e}, a{A_WW+e}")
    for e in range(8): k(f"v_lshlrev_b32 v{TF+e}, 16, v{TF+8+e}\nv_and_b32 v{TF+8+e}, 0xffff0000, v{TF+8+e}")
    twid(TF)
    for nt in range(2):
        k(f"{MF16} {v(DR+4*nt,4)}, {v(PR,4)}, {a(A_C32+4*nt,4)}, 0\n{MF16} {v(DI+4*nt,4)}, {v(PI,4)}, {a(A_C32+4*nt,4)}, 0")
    for nt in range(2):
        k(f"{MF16} {v(DR+4*nt,4)}, {v(PI,4)}, {a(A_N32+4*nt,4)}, {v(DR+4*nt,4)}\n{MF16} {v(DI+4*nt,4)}, {v(PR,4)}, {a(A_S32+4*nt,4)}, {v(DI+4*nt,4)}")
    twid(TI)
    for nt in range(2):
        k(f"ds_write_b64 v{vw2}, {v(PR+2*nt,2)} offset:{8192+nt*4*144}\nds_write_b64 v{vw2}, {v(PI+2*nt,2)} offset:{8192+IM2+nt*4*144}")
    k("s_waitcnt lgkmcnt(0)\ns_barrier")
    for ks in range(2):
        for mt in range(2):
            for pl in range(2):
                k(f"ds_read_b128 {A(pl,mt,ks)}, v{vr2} offset:{8192+IM2*pl+mt*4*144+64*ks}")
    big(A_N64, A_S64)
    body = k.release(prev)
    k.lines.extend(spread(body, fillers, 0.05, 0.95))
    k(f"s_add_u32 s17, s{S_RE}, {xout}\ns_add_u32 s18, s{S_IM}, {xout}")
    mk(k, f"cend{layer}")
    if layer == 0: k("waitvm fill")
    mk(k, f"fillw{layer}")
    for e in range(8): k(f"v_add_f32 v{FR+e}, v{FR+e}, v{DR+e}")
    for j in range(4): k(f"v_cvt_pk_bf16_f32 v{PR+j}, v{FR+2*j}, v{FR+2*j+1}")
    k(f"buffer_store_dwordx4 {v(PR,4)}, v{vx}, s[48:51], s17 offen sc1")
    for e in range(8): k(f"v_fmac_f32 v{FI+e}, s{S_SM}, v{DI+e}")
    for j in range(4): k(f"v_cvt_pk_bf16_f32 v{PI+j}, v{FI+2*j}, v{FI+2*j+1}")
    k(f"buffer_store_dwordx4 {v(PI,4)}, v{vx}, s[48:51], s18 offen sc1 ; @t=pub")

TT = 48; AR, AI, AX, AG = 64, 80, 96, 112; AF = 116; RS = 156; XB = 172; G = 180; LBR = 192; OUTB = 224

def p3(k, layer, late_b):
    xin, ht, e_off, wc = (X1T, HT1, E1, WC) if layer == 0 else (X3T, HT2, E2, WC7)
    t0, t1, t2 = TT + 13, TT + 14, TT + 15
    xsrd = "s[48:51]" if layer == 0 else "s[56:59]"
    k(f"""s_add_u32 s60, s44, {e_off}
    s_addc_u32 s61, s45, 0
    s_and_b32 s61, s61, 0xffff
    s_add_u32 s6, s{S_C128}, {xin}
    s_mov_b32 s{S_RETRY}, {RETRY_MAX}
    s_barrier
    waitvm pub""")
    mk(k, f"pub3{layer}")
    R = k.label("r3")
    k(f"{R}:")
    poll(k, vpoll3, 6, 56, t0)
    mk(k, f"poll3{layer}")
    k(f"""s_lshl_b32 s5, s{S_W}, 15
    s_add_u32 s5, s5, s6
    s_lshl_b32 s14, s{S_W}, 10
    s_mov_b32 m0, s14
    s_add_u32 s4, s11, {WBD if layer == 0 else 0}""")
    lb = list(late_b)
    for ks in range(14):
        if ks: k(f"s_add_u32 s5, s5, {32*4096}\ns_add_u32 m0, m0, 4096")
        k(f"buffer_load_dwordx4 v{vdma3}, s[48:51], s5 offen sc1 lds ; @t=d{ks}")
    for l in lb: k(l)
    xl = []
    for ks in range(14):
        pre = "s_add_u32 s4, s4, 4096\n" if (ks and ks % 4 == 0) else ""
        xl.append(pre + f"buffer_load_dwordx4 {a(A_X+4*ks,4)}, v{l16}, {xsrd}, s4 offen offset:{1024*(ks%4)}")
    def lda(ks, gram):
        b = AF + 20 * (ks & 1); L = []
        for jt in range(4):
            for u in range(2):
                L.append(f"ds_read_b64_tr_b16 {v(b+4*jt+2*u,2)}, v{(va0,va1)[jt>>1]} offset:{ks*4096+u*512+8*(jt&1)}")
        if gram:
            for u in range(2): L.append(f"ds_read_b64_tr_b16 {v(b+16+2*u,2)}, v{vag} offset:{ks*4096+u*512}")
        return L
    starts = {0: 2, 2: 5, 5: 9, 9: 14}
    k(f"waitvm d{starts[0]-1}\ns_barrier")
    for l in lda(0, True): k(l)
    for ks in range(14):
        b = AF + 20 * (ks & 1); M = []
        for jt in range(4):
            for part, D in enumerate((AR, AI)):
                M.append(f"{MF16} {v(D+4*jt,4)}, {v(b+4*jt,4)}, {a(A_W+8*ks+4*part,4)}, {'0' if ks==0 else v(D+4*jt,4)}")
        if ks == 0:
            M += [f"v_and_b32 v{TT}, v{vgm}, v{b+16}", f"v_mov_b32 v{TT+1}, v{b+17}", f"v_mov_b32 v{TT+2}, v{b+18}", f"v_mov_b32 v{TT+3}, v{b+19}",
                  f"{MF16} {v(AG,4)}, {v(b+16,4)}, {v(TT,4)}, 0"]
        else: M.append(f"{MF16} {v(AG,4)}, {v(b+16,4)}, {v(b+16,4)}, {v(AG,4)}")
        F = []
        if ks + 1 < 14:
            if (ks + 1) in starts: F.append(f"waitvm d{starts[ks+1]-1}"); F.append("s_barrier")
            F += lda(ks + 1, True)
        if ks >= 4 and xl:
            F += xl.pop(0).split("\n")
            if ks >= 10: F += xl.pop(0).split("\n")
        for l in weave(M, F, per=2): k(l)
    assert not xl
    mk(k, f"g1{layer}")
    cl = []
    for ks in range(28):
        pre = f"s_add_u32 s4, s10, {wc}\n" if ks == 0 else ("s_add_u32 s4, s4, 4096\n" if ks % 4 == 0 else "")
        cl.append(pre + f"buffer_load_dwordx4 {a(A_W+4*ks,4)}, v{l16}, s[48:51], s4 offen offset:{1024*(ks%4)}")
    k(f"""v_and_b32 v{t0}, 3, v{lane}
    v_cmp_eq_u32 vcc, 1, v{t0}
    v_cndmask_b32 v{AG}, v{AG}, v{AG+1}, vcc
    v_cmp_eq_u32 vcc, 2, v{t0}
    v_cndmask_b32 v{AG}, v{AG}, v{AG+2}, vcc
    v_cmp_eq_u32 vcc, 3, v{t0}
    v_cndmask_b32 v{AG}, v{AG}, v{AG+3}, vcc
    v_mov_b32 v{t1}, {fhex(1e-5)}
    v_fmac_f32 v{t1}, {fhex(1/448)}, v{AG}
    v_rsq_f32 v{t1}, v{t1}
    s_mov_b64 exec, s[8:9]
    ds_write_b32 v{vrsw}, v{t1}
    s_mov_b64 exec, -1
    v_lshlrev_b32 v{t0}, 6, v{vq}
    v_add_u32 v{t0}, {L_RS}, v{t0}
    s_waitcnt lgkmcnt(0)
    s_barrier""")
    for j in range(4): k(f"ds_read_b128 {v(RS+4*j,4)}, v{t0} offset:{16*j}")
    for l in lda(0, False): k(l)
    for j in range(4): k(f"v_pk_add_f32 {v(TT+2*j,2)}, {v(RS+4*j,2)}, {v(RS+4*j+2,2)}")
    k(f"""v_pk_add_f32 {v(TT,2)}, {v(TT,2)}, {v(TT+2,2)}
    v_pk_add_f32 {v(TT+4,2)}, {v(TT+4,2)}, {v(TT+6,2)}
    v_pk_add_f32 {v(TT,2)}, {v(TT,2)}, {v(TT+4,2)}
    v_cmp_u_f32 vcc, v{TT}, v{TT+1}
    s_sub_u32 s{S_RETRY}, s{S_RETRY}, 1
    s_cselect_b64 vcc, 0, vcc
    s_cbranch_vccz {R}ok
    s_waitcnt vmcnt(0) lgkmcnt(0) ; @side
    s_branch {R}
    {R}ok:""")
    prev = k.capture()
    for t in range(16): k(f"v_mul_f32 v{AR+t}, v{AR+t}, v{RS+t}\nv_mul_f32 v{AI+t}, v{AI+t}, v{RS+t}")
    cur = (AR, AI)
    for t in range(1, 16):
        nxt = (TT + 2 * (t & 1), TT + 2 * (t & 1) + 1)
        cmad(k, nxt[0], nxt[1], lr, li, cur[0], cur[1], AR + t, AI + t); cur = nxt
    for q in range(4):
        k(f"ds_bpermute_b32 v{G+2*q}, v{vn4}, v{cur[0]} offset:{64*q}\nds_bpermute_b32 v{G+2*q+1}, v{vn4}, v{cur[1]} offset:{64*q}")
    P2, P3_, EE, PQ = TT + 4, TT + 6, TT + 8, G + 8
    k(f"v_mov_b32 v{EE+2}, 0\nv_mov_b32 v{EE+3}, 0\ns_mul_i32 s14, s{S_C}, 7168")
    cmad(k, P2, P2+1, p16r, p16i, G, G+1, G+2, G+3)
    cmad(k, P3_, P3_+1, p16r, p16i, P2, P2+1, G+4, G+5)
    cmad(k, EE, EE+1, p16r, p16i, P3_, P3_+1, G+6, G+7)
    body = k.release(prev)
    k.lines.extend(spread(body, cl[:6], 0.0, 0.8))
    k(f"""s_mov_b64 exec, 0xffff
    buffer_store_dwordx4 {v(EE,4)}, v{vp16}, s[60:63], s14 offen sc1 ; @t=epub
    s_mov_b64 exec, -1""")
    mk(k, f"epub{layer}")
    k(f"v_mov_b32 v{PQ}, 0\nv_mov_b32 v{PQ+1}, 0")
    for q, r in ((1, G), (2, P2), (3, P3_)):
        k(f"""v_cmp_eq_u32 vcc, {q}, v{vq}
        v_cndmask_b32 v{PQ}, v{PQ}, v{r}, vcc
        v_cndmask_b32 v{PQ+1}, v{PQ+1}, v{r+1}, vcc""")
    ci = 6
    for ks in range(14):
        b = AF + 20 * (ks & 1)
        M = [f"{MF16} {v(AX+4*jt,4)}, {v(b+4*jt,4)}, {a(A_X+4*ks,4)}, {'0' if ks==0 else v(AX+4*jt,4)}" for jt in range(4)]
        F = lda(ks + 1, False) if ks + 1 < 14 else []
        F += cl[ci].split("\n"); ci += 1
        for l in weave(M, F, per=3): k(l)
    if layer == 0:
        k(f"v_xor_b32 v{t2}, 16, v{vxres}\nds_read_b128 {v(XB,4)}, v{vxres}\nds_read_b128 {v(XB+4,4)}, v{t2}")
    else:
        k(f"v_lshlrev_b32 v{t2}, 5, v{vq}\nds_read_b128 {v(XB,4)}, v{t2}\nds_read_b128 {v(XB+4,4)}, v{t2} offset:16")
    U = AF
    prev = k.capture()
    for j in range(8): k(f"v_lshlrev_b32 v{U+2*j}, 16, v{XB+j}\nv_and_b32 v{U+2*j+1}, 0xffff0000, v{XB+j}")
    if layer == 0:
        for t in range(16): k(f"v_fma_f32 v{AX+t}, v{AX+t}, v{RS+t}, v{U+t}")
    else:
        k(f"s_mov_b32 s14, {fhex(-1/np.sqrt(448))}")
        for t in range(16):
            k(f"""v_fma_f32 v{U+t}, v{U+t}, s14, v{AX+t}
            v_mul_f32 v{RS+t}, v{RS+t}, v{dsk}
            v_fmac_f32 v{AX+t}, v{U+t}, v{RS+t}""")
    for j in range(4): k(f"ds_write_b128 v{vstw}, {v(AX+4*j,4)} offset:{4096*j}")
    body = k.release(prev)
    k.lines.extend(spread(body, cl[ci:], 0.0, 1.0))
    mk(k, f"xend{layer}")
    lp, lo = k.label("lb"), k.label("lbx")
    k(f"s_mov_b32 s{S_POLL}, {POLL_MAX}\n{lp}:")
    for r in range(8): k(f"buffer_load_dwordx4 {v(LBR+4*r,4)}, v{EO+r}, s[60:63], 0 offen sc1")
    k("s_waitcnt vmcnt(0)")
    k(f"v_or3_b32 v{t0}, v{LBR+2}, v{LBR+6}, v{LBR+10}\nv_or3_b32 v{t1}, v{LBR+14}, v{LBR+18}, v{LBR+22}\nv_or3_b32 v{t0}, v{t0}, v{LBR+26}, v{LBR+30}\nv_or_b32 v{t0}, v{t0}, v{t1}")
    k(f"""v_cmp_ne_u32 vcc, 0, v{t0}
    s_sub_u32 s{S_POLL}, s{S_POLL}, 1
    s_cbranch_vccz {lo}
    s_cmp_lg_u32 s{S_POLL}, 0
    s_cbranch_scc1 {lp}
    {lo}:""")
    mk(k, f"lb{layer}")
    cur = (LBR + 28, LBR + 29)
    for r in range(6, -1, -1):
        nxt = (TT + 2 * (r & 1), TT + 2 * (r & 1) + 1)
        cmad(k, nxt[0], nxt[1], Lr, Li, cur[0], cur[1], LBR + 4 * r, LBR + 4 * r + 1); cur = nxt
    CR, CI = TT + 4, TT + 5
    cmul(k, CR, CI, pLr, pLi, cur[0], cur[1])
    for op in ("v_permlane16_swap_b32", "v_permlane32_swap_b32"):
        k(f"""v_mov_b32 v{TT}, v{CR}
        v_mov_b32 v{TT+1}, v{CI}
        {op} v{CR}, v{TT}
        {op} v{CI}, v{TT+1}
        v_add_f32 v{CR}, v{CR}, v{TT}
        v_add_f32 v{CI}, v{CI}, v{TT+1}""")
    cmad(k, TT, TT+1, pqr, pqi, CR, CI, PQ, PQ+1)
    cur = (TT, TT + 1)
    for t in range(16):
        k(f"""v_fmac_f32 v{AR+t}, v{lr}, v{cur[0]}
        v_fmac_f32 v{AI+t}, v{lr}, v{cur[1]}
        v_fma_f32 v{AR+t}, -v{li}, v{cur[1]}, v{AR+t}
        v_fmac_f32 v{AI+t}, v{li}, v{cur[0]}""")
        cur = (AR + t, AI + t)
    k(f"s_add_u32 s6, s{S_C128}, {ht}\ns_add_u32 s5, s6, {448*4096}")
    for part, (D, sg, so) in enumerate(((AR, "", 6), (AI, "-", 5))):
        O = OUTB + 8 * part
        for j in range(8): k(f"v_cvt_pk_bf16_f32 v{O+j}, {sg}v{D+2*j}, {sg}v{D+2*j+1}")
        for j in range(4): k(f"v_permlane16_swap_b32 v{O+j}, v{O+4+j}")
        for j in range(4): k(f"v_permlane32_swap_b32 v{O+j}, v{O+4+j}")
        k(f"""buffer_store_dwordx4 {v(O,4)}, v{vst3}, s[48:51], s{so} offen sc1
        buffer_store_dwordx4 {v(O+4,4)}, v{vst3}, s[48:51], s{so} offen offset:64 sc1 ; @t=pub""")

D0, D1, BFr, T4 = 64, 80, 96, 112

def p4(k, layer):
    t0, t1, t2 = TT, TT + 1, TT + 2
    k(f"s_mov_b32 s{S_RETRY}, {RETRY_MAX}\nwaitvm pub\ns_waitcnt lgkmcnt(0)\ns_barrier")
    mk(k, f"pub4{layer}")
    R = k.label("r4")
    k(f"{R}:")
    poll(k, vpoll4, 6, 28, t0)
    mk(k, f"poll4{layer}")
    k(f"""s_mul_i32 s14, s{S_KH}, 448
    s_lshl_b32 s17, s{S_NH}, 3
    s_add_u32 s14, s14, s17
    s_lshl_b32 s17, s14, 7
    s_mov_b32 m0, s17
    s_lshl_b32 s5, s14, 12
    s_add_u32 s5, s5, s6""")
    dm = []
    for ks in range(28):
        pre = f"s_add_u32 s5, s5, {16*4096}\ns_add_u32 m0, m0, 2048\n" if ks else ""
        dm.append(pre + f"buffer_load_dwordx4 v{vdma4}, s[48:51], s5 offen sc1 lds ; @t=h{ks}")
    AHEAD = 12
    for ks in range(AHEAD): k(dm[ks])
    for j in range(4): k(f"ds_read_b128 {v(D0+4*j,4)}, v{vstr} offset:{4096*j}")
    def lda(ks):
        b = BFr + 8 * (ks & 1)
        return [f"ds_read_b64_tr_b16 {v(b+4*mt+2*u,2)}, v{(vb0,vb1)[mt]} offset:{ks*2048+u*512}" for mt in range(2) for u in range(2)]
    G4 = 4
    k(f"waitvm h{G4-1}\ns_barrier")
    for l in lda(0): k(l)
    for ks in range(28):
        b = BFr + 8 * (ks & 1)
        M = [f"{MF32} {v(D0,16)}, {v(b,4)}, {a(A_W+4*ks,4)}, {v(D0,16)}",
             f"{MF32} {v(D1,16)}, {v(b+4,4)}, {a(A_W+4*ks,4)}, {'0' if ks==0 else v(D1,16)}"]
        F = []
        if ks + AHEAD < 28: F += dm[ks + AHEAD].split("\n")
        if ks + 1 < 28:
            if (ks + 1) % G4 == 0: F += [f"waitvm h{ks+G4}", "s_barrier"]
            F += lda(ks + 1)
        for l in weave(M, F, per=5): k(l)
    mk(k, f"g4{layer}")
    k(f"""s_lshl_b32 s14, s{S_W}, 12
    s_add_u32 s14, s14, {L_XCH}
    v_add_u32 v{t0}, s14, v{l16}
    s_xor_b32 s14, s{S_W}, 2
    s_lshl_b32 s14, s14, 12
    s_add_u32 s14, s14, {L_XCH}
    v_add_u32 v{t1}, s14, v{l16}""")
    for j in range(4): k(f"ds_write_b128 v{t0}, {v(D1+4*j,4)} offset:{1024*j}")
    for j in range(8): k(f"v_pk_add_f32 {v(T4+2*j,2)}, {v(D0+2*j,2)}, {v(D1+2*j,2)}")
    for j in range(4): k(f"v_pk_add_f32 {v(T4+2*j,2)}, {v(T4+2*j,2)}, {v(T4+8+2*j,2)}")
    k(f"""v_pk_add_f32 {v(T4,2)}, {v(T4,2)}, {v(T4+4,2)}
    v_pk_add_f32 {v(T4+2,2)}, {v(T4+2,2)}, {v(T4+6,2)}
    v_pk_add_f32 {v(T4,2)}, {v(T4,2)}, {v(T4+2,2)}
    v_cmp_u_f32 vcc, v{T4}, v{T4+1}
    s_cmp_lg_u64 vcc, 0
    s_cselect_b32 s14, 1, 0
    v_mov_b32 v{T4}, s14
    s_lshl_b32 s14, s{S_W}, 2
    s_add_u32 s14, s14, {L_FLG}
    v_mov_b32 v{T4+1}, s14
    ds_write_b32 v{T4+1}, v{T4}
    v_mov_b32 v{T4+1}, {L_FLG}
    s_waitcnt lgkmcnt(0)
    s_barrier
    ds_read_b128 {v(T4+4,4)}, v{T4+1}""")
    for j in range(4): k(f"ds_read_b128 {v(D1+4*j,4)}, v{t1} offset:{1024*j}")
    ok = k.label("ok4")
    k(f"""v_or3_b32 v{T4}, v{T4+4}, v{T4+5}, v{T4+6}
    v_or_b32 v{T4}, v{T4}, v{T4+7}
    v_cmp_ne_u32 vcc, 0, v{T4}
    s_sub_u32 s{S_RETRY}, s{S_RETRY}, 1
    s_cselect_b64 vcc, 0, vcc
    s_cbranch_vccz {ok}
    s_waitcnt lgkmcnt(0) ; @side
    s_barrier
    s_branch {R}
    {ok}:""")
    for t in range(16): k(f"v_add_f32 v{D0+t}, v{D0+t}, v{D1+t}")
    if layer == 1:
        k(f"""s_lshl_b32 s14, s{S_C}, 1
        s_add_u32 s14, s14, s{S_KH}
        s_mul_i32 s14, s14, {32*1792}""")
        for t in range(16):
            if t and t % 2 == 0: k("s_add_u32 s14, s14, 3584")
            k(f"buffer_store_dword v{D0+t}, v{vout}, s[64:67], s14 offen offset:{1792*(t&1)}")
        return
    O = BFr
    for j in range(8): k(f"v_cvt_pk_bf16_f32 v{O+j}, v{D0+2*j}, v{D0+2*j+1}")
    for j in range(4): k(f"v_permlane16_swap_b32 v{O+j}, v{O+4+j}")
    k(f"""s_add_u32 s14, s{S_C128}, {X2T}
    s_add_u32 s17, s14, {16*4096}
    buffer_store_dwordx4 {v(O,4)}, v{vst4}, s[48:51], s14 offen sc1
    buffer_store_dwordx4 {v(O+4,4)}, v{vst4}, s[48:51], s17 offen sc1""")
    T = T4
    for t in range(16): k(f"v_mul_f32 v{D1+t}, v{vcolm}, v{D0+t}")
    for t in range(16): k(f"v_mul_f32 v{T+t}, v{D1+t}, v{D0+t}")
    for t in range(8): k(f"v_permlane16_swap_b32 v{T+t}, v{T+8+t}")
    for t in range(8): k(f"v_add_f32 v{T+t}, v{T+t}, v{T+8+t}")
    def rs(nout, bit, dpp):
        k(f"v_and_b32 v{t0}, {bit}, v{lane}\nv_cmp_ne_u32 vcc, 0, v{t0}")
        for i in range(nout):
            k(f"v_cndmask_b32 v{T+8+i}, v{T+nout+i}, v{T+i}, vcc\nv_cndmask_b32 v{T+i}, v{T+i}, v{T+nout+i}, vcc")
        for i in range(nout):
            k(f"v_add_f32_dpp v{T+i}, v{T+8+i}, v{T+i} {dpp} row_mask:0xf bank_mask:0xf")
    rs(4, 8, "row_ror:8"); rs(2, 4, "row_half_mirror"); rs(1, 2, "quad_perm:[2,3,0,1]")
    sk = k.label("nsp")
    k(f"""v_add_f32_dpp v{T}, v{T}, v{T} quad_perm:[1,0,3,2] row_mask:0xf bank_mask:0xf
    ds_write_b32 v{vsp}, v{T}
    v_lshlrev_b32 v{t0}, 3, v{lane}
    v_add_u32 v{t0}, {L_RED}, v{t0}
    s_waitcnt lgkmcnt(0)
    s_barrier
    s_cmp_lg_u32 s{S_W}, 0
    s_cbranch_scc1 {sk}
    ds_read_b64 {v(T,2)}, v{t0}
    ds_read_b64 {v(T+2,2)}, v{t0} offset:256
    s_lshl_b32 s14, s{S_J}, 12
    s_add_u32 s14, s14, s{S_C128}
    s_add_u32 s14, s14, {SP2}
    v_lshlrev_b32 v{t0}, 2, v{lane}
    s_waitcnt lgkmcnt(0)
    v_pk_add_f32 {v(T,2)}, {v(T,2)}, {v(T+2,2)}
    v_cvt_pk_bf16_f32 v{T}, v{T}, v{T+1}
    s_mov_b32 exec_hi, 0
    buffer_store_dword v{T}, v{t0}, s[48:51], s14 offen sc1
    s_mov_b64 exec, -1
    {sk}:
    s_waitcnt vmcnt(0)""")

def fills(k):
    F = TB + 8; t0, t1 = TB + 12, TB + 13
    k(f"v_mov_b32 v{F}, -1\nv_mov_b32 v{F+1}, -1\nv_mov_b32 v{F+2}, -1\nv_mov_b32 v{F+3}, -1")
    k(f"""s_lshl_b32 s14, s{S_J}, 2
    s_add_u32 s14, s14, s{S_W}
    s_lshl_b32 s14, s14, 16
    s_add_u32 s14, s14, s{S_C128}""")
    for base in (HT1, HT1 + 448 * 4096, X2T, HT2, HT2 + 448 * 4096):
        for h in range(2):
            k(f"s_add_u32 s17, s14, {base + h * 8 * 4096}\nbuffer_store_dwordx4 {v(F,4)}, v{vdma3}, s[48:51], s17 offen sc1")
    k(f"""s_add_u32 s17, s{S_RE}, {X3T}
    buffer_store_dwordx4 {v(F,4)}, v{vx}, s[48:51], s17 offen sc1
    s_add_u32 s17, s{S_IM}, {X3T}
    buffer_store_dwordx4 {v(F,4)}, v{vx}, s[48:51], s17 offen sc1
    s_mul_i32 s14, s{S_C}, 7168
    s_add_u32 s14, s14, {E1}
    s_add_u32 s17, s14, {E_BYTES}
    s_mov_b64 exec, 0xffff
    buffer_store_dwordx4 {v(F,4)}, v{vp16}, s[48:51], s14 offen sc1
    buffer_store_dwordx4 {v(F,4)}, v{vp16}, s[48:51], s17 offen sc1
    s_lshl_b32 s14, s{S_J}, 12
    s_add_u32 s14, s14, s{S_C128}
    s_add_u32 s14, s14, {SP2}
    s_mov_b64 exec, 0xff
    buffer_store_dwordx4 {v(F,4)}, v{l16}, s[48:51], s14 offen sc1 ; @t=fill
    s_mov_b64 exec, -1""")

def build_kp():
    k = Kernel("kp")
    k(f"""s_load_dwordx2 s[44:45], s[0:1], 112
    s_load_dwordx4 s[24:27], s[0:1], 32
    s_load_dwordx4 s[36:39], s[0:1], 80
    s_load_dwordx2 s[40:41], s[0:1], 96
    s_cmp_ge_u32 s2, 224
    s_cbranch_scc1 L_kp_x""")
    wave_lane(k, S_W, lane, TB)
    vw = setup_conv(k)
    table_ptr(k, 20, "tab_fft"); srd(k, 52, 20, FFT_BYTES)
    decode_cj(k, 2, S_C, S_J, 14)
    k(f"""s_mul_i32 s3, s{S_W}, {14*1024}
    s_add_u32 s4, s3, 4096
    s_add_u32 s5, s3, 8192
    s_add_u32 s6, s3, 12288
    s_lshl_b32 s21, s2, 13
    s_add_u32 s21, s21, {WT}
    s_waitcnt lgkmcnt(0)""")
    mk(k, "ka")
    srd(k, 48, 44, WS_BYTES)
    conv_loads(k, 0)
    def cl(dst, blk):
        sreg = (3, 4, 5, 6)[blk // 4]
        k(f"buffer_load_dwordx4 {a(dst,4)}, v{l16}, s[52:55], s{sreg} offen offset:{1024*(blk%4)}")
    for i in range(2): cl(A_C64 + 4*i, i); cl(A_S64 + 4*i, 2 + i); cl(A_N64 + 4*i, 4 + i)
    for i in range(4): cl(A_TF + 4*i, 6 + i)
    k("s_mov_b32 s22, 0xe000\ns_mov_b32 s23, 0xf000")
    for i, dst in enumerate((A_C32, A_C32 + 4, A_S32, A_S32 + 4, A_N32, A_N32 + 4)):
        k(f"buffer_load_dwordx4 {a(dst,4)}, v{l16}, s[52:55], s{22 + i // 4} offen offset:{1024*(i%4)}")
    for e in range(8): k(f"buffer_load_dword a{A_WW+e}, v{vw}, s[48:51], s21 offen offset:{256*e}")
    for i in range(4): cl(A_TI + 4*i, 10 + i)
    vp = setup_rest(k)
    lre, lim, ldt = TB + 14, TB + 15, TB + 1
    k(f"""v_lshlrev_b32 v{vp}, 1, v{vp}
    global_load_ushort v{228}, v{vp}, s[24:25]
    global_load_ushort v{229}, v{vp}, s[26:27]
    global_load_ushort v{230}, v{vp}, s[36:37]
    global_load_ushort v{dsk}, v{vp}, s[38:39]""")
    fills(k)
    table_ptr(k, 20, "tab_qd"); srd(k, 56, 20, 28 * 14336)
    k(f"s_mov_b32 s62, {E_BYTES}\ns_mov_b32 s63, 0x20000")
    srd(k, 64, 40, 2048 * 448 * 4)
    mk(k, "pro")
    NB0 = int(os.environ.get("NB0", "6"))
    conv_compute(k, 0, B_LOADS[:NB0])
    for l in B_LOADS[NB0:NB0 + 10]: k(l)
    lam_setup(k, 228, 229, 230)
    p3(k, 0, B_LOADS[NB0 + 10:])
    p4(k, 0)
    mk(k, "p4end")
    lp, lx = k.label("h5"), k.label("h5x")
    k(f"s_mov_b32 s{S_POLL}, {POLL_MAX}\n{lp}:")
    conv_loads(k, 1)
    k("s_waitcnt vmcnt(0)")
    regs = list(range(XR, XR + 36))
    k(f"v_max3_u32 v{SQ}, v{regs[0]}, v{regs[1]}, v{regs[2]}\nv_max3_u32 v{SQ+1}, v{regs[3]}, v{regs[4]}, v{regs[5]}")
    for i in range(6, 36, 4):
        k(f"v_max3_u32 v{SQ}, v{SQ}, v{regs[i]}, v{regs[i+1]}")
        if i + 3 < 36: k(f"v_max3_u32 v{SQ+1}, v{SQ+1}, v{regs[i+2]}, v{regs[i+3]}")
    k(f"""v_max_u32 v{SQ}, v{SQ}, v{SQ+1}
    v_cmp_eq_u32 vcc, -1, v{SQ}
    s_sub_u32 s{S_POLL}, s{S_POLL}, 1
    s_cbranch_vccz {lx}
    s_cmp_lg_u32 s{S_POLL}, 0
    s_cbranch_scc1 {lp}
    {lx}:""")
    mk(k, "h5")
    conv_compute(k, 1, B_LOADS)
    p3(k, 1, [])
    p4(k, 1)
    k("L_kp_x:\ns_endpgm")
    return k, dict(grid=224, lds=KP_LDS, nv=240, na=256, ns=76)

FFT_BYTES = 62 * 1024
def fft_table():
    lane_ = np.arange(64); n = lane_ & 15; g = lane_ >> 4
    def pack8(vals):
        b = np.array([[bf16bits(x) for x in row] for row in vals], np.uint32)
        return b[:, 0::2] | (b[:, 1::2] << 16)
    blocks = []
    for w in range(4):
        angs = []
        for ks in range(2):
            a_ = (16*w + n)[:, None]; b_ = (32*ks + 8*g)[:, None] + np.arange(8)[None, :]
            angs.append(2*np.pi*((a_*b_) % 64)/64)
        blocks += [pack8(np.cos(x)) for x in angs] + [pack8(np.sin(x)) for x in angs] + [pack8(-np.sin(x)) for x in angs]
        k1 = (16*w + n)[:, None]; n2 = (8*g)[:, None] + np.arange(8)[None, :]
        ang = 2*np.pi*(k1*n2)/2048
        t = np.concatenate([np.cos(ang), -np.sin(ang)], 1).astype(np.float32).view(np.uint32)
        for j in range(4): blocks.append(t[:, 4*j:4*j+4])
        tr = np.zeros((64, 8)); ti = np.zeros((64, 8))
        for nt in range(2):
            for i in range(4):
                n2 = 8*(n >> 2) + 4*nt + (n & 3); k1 = 16*w + 4*g + i
                ang = 2*np.pi*(k1*n2)/2048
                tr[:, 4*nt+i] = np.cos(ang)/2048; ti[:, 4*nt+i] = np.sin(ang)/2048
        t = np.concatenate([tr, ti], 1).astype(np.float32).view(np.uint32)
        for j in range(4): blocks.append(t[:, 4*j:4*j+4])
    angs = []
    for t_ in range(2):
        a_ = (8*(n >> 2) + 4*t_ + (n & 3))[:, None]; b_ = (8*g)[:, None] + np.arange(8)[None, :]
        angs.append(2*np.pi*((a_*b_) % 32)/32)
    blocks += [pack8(np.cos(x)) for x in angs] + [pack8(np.sin(x)) for x in angs] + [pack8(-np.sin(x)) for x in angs]
    d = np.concatenate([b.reshape(-1) for b in blocks]).astype(np.uint64)
    assert len(d) * 4 == FFT_BYTES
    q = d[0::2] | (d[1::2] << np.uint64(32))
    L = [".p2align 8", ".type tab_fft,@object", "tab_fft:"]
    for i in range(0, len(q), 8):
        L.append(".quad " + ",".join("0x%x" % int(x) for x in q[i:i+8]))
    return "\n".join(L)
```

```python
import sys
from common import *
import k1, kp
from gen import assemble
if __name__ == "__main__":
    ks = []
    a_, i = k1.build_k1(); ks.append(("k1", a_, i))
    a_, i = kp.build_kp(); ks.append(("kp", a_, i))
    path = sys.argv[1] if len(sys.argv) > 1 else "out2.s"
    assemble(ks, ["k1", "kp"], q_tables() + "\n" + kp.fft_table(), path)
```

```python
STAMP = 0x1C00000
NM = 20
def add_stamps(name, lines, idx):
    pre = [f"s_memrealtime s[100:101]", "s_memtime s[76:77]"] + [f"s_mov_b32 s{78+i}, 0" for i in range(NM)] + ["s_waitcnt lgkmcnt(0)", "s_mov_b32 s98, s76", "s_mov_b32 s99, s100", f"s_mov_b32 s100, {idx}"]
    return pre + lines
END = """s_waitcnt vmcnt(0) lgkmcnt(0)
s_memrealtime s[8:9]
s_memtime s[10:11]
s_load_dwordx2 s[4:5], s[0:1], 112
s_waitcnt lgkmcnt(0)
s_mov_b64 exec, 1
v_mov_b32 v3, 0
s_lshl_b32 s6, s100, 9
s_add_u32 s6, s6, s2
s_lshl_b32 s6, s6, 7
s_add_u32 s6, s6, %d
s_add_u32 s4, s4, s6
s_addc_u32 s5, s5, 0
s_sub_u32 s10, s10, s98
v_mov_b32 v4, s99
v_mov_b32 v5, s8
v_mov_b32 v6, s10
v_readfirstlane_b32 s6, v0
s_getreg_b32 s7, hwreg(HW_REG_XCC_ID)
v_mov_b32 v7, s7
""" % STAMP + "\n".join(f"s_sub_u32 s{78+i}, s{78+i}, s98\nv_mov_b32 v{8+i}, s{78+i}" for i in range(NM)) + """
s_cmp_lt_u32 s6, 64
s_cbranch_scc0 1f
""" + "\n".join(f"global_store_dwordx4 v3, v[{4+4*i}:{7+4*i}], s[4:5] offset:{16*i}" for i in range(6)) + """
1:
s_endpgm"""
def patch_end(lines):
    out = []
    for l in lines:
        if l.strip() == "s_endpgm": out.extend(END.split("\n"))
        else: out.append(l)
    return out
```

```python
from common import *

QSTR = 14400
N_A, N_B, N_D, N_C, N_W = 224, 49, 49, 98, 64
N_R = 28
K1_GRID = N_A + N_B + N_D + N_C + N_W + N_R
K1_LDS = 4 * QSTR

def prologue_ptrs(k):
    k("""s_load_dwordx16 s[16:31], s[0:1], 0
    s_load_dwordx8 s[32:39], s[0:1], 64
    s_load_dwordx4 s[40:43], s[0:1], 96
    s_load_dwordx2 s[44:45], s[0:1], 112""")

def wave_lane(k, s_w, v_lane, vt):
    k(f"""v_lshrrev_b32 v{vt}, 6, v0
    v_and_b32 v{v_lane}, 63, v0
    v_readfirstlane_b32 s{s_w}, v{vt}""")

def q_dma_issue(k, i, v_l16, s_qoff, s_lds):
    if i % 4 == 0:
        if i == 0:
            k(f"s_mov_b32 m0, s{s_lds}")
        else:
            k(f"s_add_u32 s{s_qoff}, s{s_qoff}, 4096\ns_add_u32 m0, m0, 4096")
    k(f"buffer_load_dwordx4 v{v_l16}, s[52:55], s{s_qoff} offen offset:{(i % 4) * 1024} lds")

def job_a(k):
    S_C, S_J, S_T, S_W, S_Q, S_L = 4, 5, 6, 7, 8, 9
    lane, l16, vx, t0, t1, t2 = 1, 2, 3, 4, 5, 6
    XF = 8
    ACC = 64
    BF = 80
    decode_cj(k, 2, S_C, S_J, S_T)
    wave_lane(k, S_W, lane, t0)
    table_ptr(k, 10, "tab_qj")
    srd(k, 52, 10, 28 * 14336)
    k(f"""v_lshlrev_b32 v{l16}, 4, v{lane}
    s_lshl_b32 s{S_Q}, s{S_J}, 2
    s_add_u32 s{S_Q}, s{S_Q}, s{S_W}
    s_mul_i32 s{S_Q}, s{S_Q}, 14336
    s_mul_i32 s{S_L}, s{S_W}, {QSTR}
    v_and_b32 v{t0}, 15, v{lane}
    v_lshrrev_b32 v{t1}, 4, v{lane}
    s_lshl_b32 s12, s{S_C}, 6
    s_lshl_b32 s13, s{S_W}, 4
    s_add_u32 s12, s12, s13          ; row0 = 64c+16w
    s_and_b32 s13, s{S_W}, 1
    v_bfe_u32 v{t2}, v{lane}, 2, 2
    v_xor_b32 v{t2}, s13, v{t2}
    v_lshlrev_b32 v{t2}, 1, v{t2}
    v_and_b32 v{vx}, 1, v{lane}
    v_lshl_add_u32 v{t2}, v{vx}, 3, v{t2}
    v_bfe_u32 v{vx}, v{lane}, 1, 1
    v_add3_u32 v{t2}, v{t2}, v{vx}, s12
    v_mul_u32_u24 v{vx}, 896, v{t2}
    v_lshl_add_u32 v{vx}, v{t1}, 4, v{vx}""")
    for i in range(7): q_dma_issue(k, i, l16, S_Q, S_L)
    k("s_waitcnt lgkmcnt(0)")
    k.mark(0)
    srd(k, 56, 16, 2048 * 896)
    srd(k, 48, 44, WS_BYTES)
    for i in range(7): k(f"buffer_load_dwordx4 {v(XF+4*i,4)}, v{vx}, s[56:59], 0 offen offset:{64*i}")
    for i in range(7, 14): q_dma_issue(k, i, l16, S_Q, S_L)
    for i in range(7, 14): k(f"buffer_load_dwordx4 {v(XF+4*i,4)}, v{vx}, s[56:59], 0 offen offset:{64*i}")
    k(f"""v_mov_b32 v112, -1
    v_mov_b32 v113, -1
    v_mov_b32 v114, -1
    v_mov_b32 v115, -1
    v_lshlrev_b32 v116, 4, v0
    s_lshl_b32 s14, s2, 13
    s_add_u32 s14, s14, {X1T}
    s_add_u32 s15, s14, 4096
    buffer_store_dwordx4 v[112:115], v116, s[48:51], s14 offen sc1
    buffer_store_dwordx4 v[112:115], v116, s[48:51], s15 offen sc1
    s_lshl_b32 s14, s2, 12
    s_add_u32 s15, s14, {SP2 - 113*4096}
    s_add_u32 s14, s14, {E1}
    s_cmp_lt_u32 s2, 113
    s_cselect_b32 s14, s14, s15
    s_cmp_lt_u32 s2, 120
    s_cselect_b32 s15, s50, 0
    s_mov_b32 s60, s48
    s_mov_b32 s61, s49
    s_mov_b32 s62, s15
    s_mov_b32 s63, s51
    buffer_store_dwordx4 v[112:115], v116, s[60:63], s14 offen sc1""")
    def ldb(ks, buf):
        for nt in range(4):
            k(f"ds_read_b128 {v(BF+16*buf+4*nt,4)}, v{l16} offset:{nt*QSTR+ks*1024}")
    k.mark(1)
    k("s_waitcnt vmcnt(17)\ns_barrier")
    k.mark(2)
    ldb(0, 0)
    for ks in range(14):
        if ks == 6:
            k("s_waitcnt vmcnt(3)\ns_barrier")
        if ks + 1 < 14:
            ldb(ks + 1, (ks + 1) & 1)
            k("s_waitcnt lgkmcnt(4)")
        else:
            k("s_waitcnt lgkmcnt(0)")
        for nt in range(4):
            c = "0" if ks == 0 else v(ACC+4*nt, 4)
            k(f"v_mfma_f32_16x16x32_bf16 {v(ACC+4*nt,4)}, {v(XF+4*ks,4)}, {v(BF+16*(ks&1)+4*nt,4)}, {c}")
    k.mark(3)
    k(f"""s_lshl_b32 s13, s{S_J}, 18
    s_lshl_b32 s14, s12, 1
    s_add_u32 s13, s13, s14
    s_add_u32 s13, s13, {X0T}
    v_lshlrev_b32 v{t2}, 12, v{t0}
    v_lshl_add_u32 v{t2}, v{t1}, 3, v{t2}""")
    for nt in range(4):
        k(f"""v_cvt_pk_bf16_f32 v{BF+2*nt}, v{ACC+4*nt}, v{ACC+4*nt+1}
        v_cvt_pk_bf16_f32 v{BF+2*nt+1}, v{ACC+4*nt+2}, v{ACC+4*nt+3}
        buffer_store_dwordx2 {v(BF+2*nt,2)}, v{t2}, s[48:51], s13 offen""")
        if nt < 3: k("s_add_u32 s13, s13, 0x10000")
    done = k.label("adone")
    su, sq, su2, sq2 = 96, 97, 98, 99
    k(f"""s_mov_b32 s14, 0x3f803f80
    v_mov_b32 v{su}, 0
    v_mov_b32 v{sq}, 0
    v_mov_b32 v{su2}, 0
    v_mov_b32 v{sq2}, 0
    s_cmp_lg_u32 s{S_J}, 0
    s_cbranch_scc1 {done}""")
    for i in range(0, 56, 2):
        k(f"""v_dot2_f32_bf16 v{su}, v{XF+i}, s14, v{su}
        v_dot2_f32_bf16 v{sq}, v{XF+i}, v{XF+i}, v{sq}
        v_dot2_f32_bf16 v{su2}, v{XF+i+1}, s14, v{su2}
        v_dot2_f32_bf16 v{sq2}, v{XF+i+1}, v{XF+i+1}, v{sq2}""")
    k(f"""v_add_f32 v{su}, v{su}, v{su2}
    v_add_f32 v{sq}, v{sq}, v{sq2}""")
    for op in ("v_permlane16_swap_b32", "v_permlane32_swap_b32"):
        k(f"""v_mov_b32 v{su2}, v{su}
        v_mov_b32 v{sq2}, v{sq}
        {op} v{su}, v{su2}
        {op} v{sq}, v{sq2}
        v_add_f32 v{su}, v{su}, v{su2}
        v_add_f32 v{sq}, v{sq}, v{sq2}""")
    k(f"""v_mul_f32 v{su}, v{su}, v{su}
    v_fmac_f32 v{sq}, {fhex(-1/448)}, v{su}
    v_max_f32 v{sq}, 0, v{sq}
    v_cvt_pk_bf16_f32 v{sq}, v{sq}, v{sq}
    {done}:
    v_lshlrev_b32 v{t2}, 1, v{lane}
    s_lshl_b32 s13, s12, 1
    s_lshl_b32 s14, s{S_J}, 12
    s_add_u32 s13, s13, s14
    s_add_u32 s13, s13, {SP0}
    s_mov_b64 exec, 0xffff
    buffer_store_short v{sq}, v{t2}, s[48:51], s13 offen
    s_endpgm""")

def pre_common(k, S_JB, S_W, S_Q, S_L, lane, l16, va, t0, t1, t2):
    table_ptr(k, 10, "tab_qj")
    srd(k, 52, 10, 28 * 14336)
    k(f"""v_lshlrev_b32 v{l16}, 4, v{lane}
    s_lshl_b32 s{S_Q}, s{S_JB}, 2
    s_add_u32 s{S_Q}, s{S_Q}, s{S_W}
    s_mul_i32 s{S_Q}, s{S_Q}, 14336
    s_mul_i32 s{S_L}, s{S_W}, {QSTR}""")
    for i in range(14): q_dma_issue(k, i, l16, S_Q, S_L)
    k(f"""v_bfe_u32 v{t0}, v{lane}, 3, 1
    v_mul_u32_u24 v{va}, {QSTR}, v{t0}
    v_and_b32 v{t0}, 0x30, v{lane}
    v_bfe_u32 v{t1}, v{lane}, 2, 1
    v_lshl_add_u32 v{t0}, v{t1}, 3, v{t0}
    v_and_b32 v{t1}, 3, v{lane}
    v_add_u32 v{t0}, v{t0}, v{t1}
    v_lshl_add_u32 v{va}, v{t0}, 4, v{va}""")

def lda_perm(k, va, ks, base):
    for K in range(2):
        for mt in range(2):
            k(f"ds_read_b128 {v(base+8*K+4*mt,4)}, v{va} offset:{2*K*QSTR+ks*1024+64*mt}")

def job_b(k):
    S_ID, S_JB, S_PB, S_W, S_Q, S_L, S_PT = 4, 5, 6, 7, 8, 9, 12
    lane, l16, va, t0, t1, t2, vb, vp = 1, 2, 3, 4, 5, 6, 7, 8
    lre, lim, ldt, lr, li, cr, ci, msk = 9, 10, 11, 12, 13, 14, 15, 16
    BR, BI = 20, 76
    ACC = 132
    AF = 164
    k(f"s_sub_u32 s{S_ID}, s2, {N_A}")
    div7(k, S_JB, S_PB, S_ID)
    wave_lane(k, S_W, lane, t0)
    pre_common(k, S_JB, S_W, S_Q, S_L, lane, l16, va, t0, t1, t2)
    k(f"""s_lshl_b32 s{S_PT}, s{S_PB}, 2
    s_add_u32 s{S_PT}, s{S_PT}, s{S_W}
    s_lshl_b32 s13, s{S_PT}, 4
    v_and_b32 v{t0}, 15, v{lane}
    v_add_u32 v{vp}, s13, v{t0}            ; p
    v_lshrrev_b32 v{t1}, 4, v{lane}
    v_mul_u32_u24 v{vb}, 896, v{vp}
    v_lshl_add_u32 v{vb}, v{t1}, 4, v{vb}
    v_lshlrev_b32 v{vp}, 1, v{vp}
    s_waitcnt lgkmcnt(0)""")
    srd(k, 56, 28, 448 * 896); srd(k, 60, 30, 448 * 896); srd(k, 48, 44, WS_BYTES)
    k(f"""global_load_ushort v{lre}, v{vp}, s[24:25]
    global_load_ushort v{lim}, v{vp}, s[26:27]
    global_load_ushort v{ldt}, v{vp}, s[36:37]""")
    for i in range(14):
        k(f"buffer_load_dwordx4 {v(BR+4*i,4)}, v{vb}, s[56:59], 0 offen offset:{64*i}")
        k(f"buffer_load_dwordx4 {v(BI+4*i,4)}, v{vb}, s[60:63], 0 offen offset:{64*i}")
    k("s_waitcnt vmcnt(28)")
    emit_lam(k, lre, lim, ldt, lr, li, t0, t1)
    k(f"""v_add_f32 v{lr}, -1.0, v{lr}
    v_mul_f32 v{t0}, v{lre}, v{lre}
    v_fmac_f32 v{t0}, v{lim}, v{lim}
    v_rcp_f32 v{t0}, v{t0}
    v_mul_f32 v{cr}, v{lr}, v{lre}
    v_add_f32 v{t0}, v{t0}, v{t0}
    v_fmac_f32 v{cr}, v{li}, v{lim}
    v_mul_f32 v{ci}, v{li}, v{lre}
    v_fma_f32 v{ci}, -v{lr}, v{lim}, v{ci}
    v_mul_f32 v{cr}, v{cr}, v{t0}
    v_mul_f32 v{ci}, v{ci}, v{t0}
    v_mov_b32 v{msk}, 1.0
    v_cmp_gt_u32 vcc, 16, v{lane}
    s_cmp_eq_u32 s{S_JB}, 0
    s_cselect_b64 vcc, vcc, 0
    v_cndmask_b32 v{msk}, v{msk}, 0, vcc""")
    k("s_waitcnt vmcnt(0)\ns_barrier")
    lda_perm(k, va, 0, AF)
    for ks in range(14):
        if ks + 1 < 14:
            lda_perm(k, va, ks + 1, AF + 16 * ((ks + 1) & 1)); k("s_waitcnt lgkmcnt(4)")
        else: k("s_waitcnt lgkmcnt(0)")
        for tl in range(4):
            for part in range(2):
                d = ACC + 8 * tl + 4 * part
                c = "0" if ks == 0 else v(d, 4)
                k(f"v_mfma_f32_16x16x32_bf16 {v(d,4)}, {v(AF+16*(ks&1)+4*tl,4)}, {v((BR,BI)[part]+4*ks,4)}, {c}")
    k(f"""s_mul_i32 s13, s{S_PT}, 28
    s_lshl_b32 s14, s{S_JB}, 1
    s_add_u32 s13, s13, s14
    s_lshl_b32 s13, s13, 10
    s_add_u32 s13, s13, {WBB}
    s_add_u32 s14, s13, {14*1024}""")
    O = 20
    k(f"v_mul_f32 v{ACC}, v{ACC}, v{msk}\nv_mul_f32 v{ACC+4}, v{ACC+4}, v{msk}")
    for K in range(2):
        for mt in range(2):
            d = ACC + 8 * (2 * K + mt)
            for i in range(4):
                k(f"""v_mul_f32 v{O+i}, v{d+i}, v{cr}
                v_fma_f32 v{O+i}, -v{d+4+i}, v{ci}, v{O+i}
                v_mul_f32 v{O+4+i}, v{d+i}, v{ci}
                v_fmac_f32 v{O+4+i}, v{d+4+i}, v{cr}""")
            P = 32 + 8 * K
            k(f"""v_cvt_pk_bf16_f32 v{P+2*mt}, v{O}, v{O+1}
            v_cvt_pk_bf16_f32 v{P+2*mt+1}, v{O+2}, v{O+3}
            v_cvt_pk_bf16_f32 v{P+4+2*mt}, v{O+4}, v{O+5}
            v_cvt_pk_bf16_f32 v{P+4+2*mt+1}, v{O+6}, v{O+7}""")
        k(f"""buffer_store_dwordx4 {v(32+8*K,4)}, v{l16}, s[48:51], s13 offen offset:{1024*K} sc1
        buffer_store_dwordx4 {v(36+8*K,4)}, v{l16}, s[48:51], s14 offen offset:{1024*K} sc1""")
    k("s_endpgm")

def job_d(k):
    S_ID, S_JB, S_OB, S_W, S_Q, S_L, S_JT = 4, 5, 6, 7, 8, 9, 12
    lane, l16, va, t0, t1, t2, vd, msk = 1, 2, 3, 4, 5, 6, 7, 8
    QF, DF = 20, 76
    ACC = 132
    AF = 164
    T = 200
    k(f"s_sub_u32 s{S_ID}, s2, {N_A+N_B}")
    div7(k, S_JB, S_OB, S_ID)
    wave_lane(k, S_W, lane, t0)
    pre_common(k, S_JB, S_W, S_Q, S_L, lane, l16, va, t0, t1, t2)
    k(f"""s_lshl_b32 s{S_JT}, s{S_OB}, 2
    s_add_u32 s{S_JT}, s{S_JT}, s{S_W}
    s_mul_i32 s13, s{S_JT}, 14336
    v_and_b32 v{vd}, 0x30, v{lane}       ; 16*g bytes
    s_waitcnt lgkmcnt(0)""")
    srd(k, 56, 38, 896); srd(k, 48, 44, WS_BYTES)
    for i in range(14):
        if i and i % 4 == 0: k("s_add_u32 s13, s13, 4096")
        k(f"buffer_load_dwordx4 {v(QF+4*i,4)}, v{l16}, s[52:55], s13 offen offset:{1024*(i%4)}")
        k(f"buffer_load_dwordx4 {v(DF+4*i,4)}, v{vd}, s[56:59], 0 offen offset:{64*i}")
    k(f"""v_mov_b32 v{msk}, 1.0
    v_cmp_gt_u32 vcc, 16, v{lane}
    s_cmp_eq_u32 s{S_JB}, 0
    s_cselect_b64 vcc, vcc, 0
    v_cndmask_b32 v{msk}, v{msk}, 0, vcc""")
    for i in range(14):
        k(f"s_waitcnt vmcnt({2*(13-i)})")
        for r in range(4):
            q, d = QF + 4 * i + r, DF + 4 * i + r
            k(f"""v_lshlrev_b32 v{T}, 16, v{q}
            v_lshlrev_b32 v{T+1}, 16, v{d}
            v_and_b32 v{q}, 0xffff0000, v{q}
            v_and_b32 v{d}, 0xffff0000, v{d}
            v_mul_f32 v{T}, v{T}, v{T+1}
            v_mul_f32 v{q}, v{q}, v{d}
            v_cvt_pk_bf16_f32 v{q}, v{T}, v{q}""")
    k("s_barrier")
    lda_perm(k, va, 0, AF)
    for ks in range(14):
        if ks + 1 < 14:
            lda_perm(k, va, ks + 1, AF + 16 * ((ks + 1) & 1)); k("s_waitcnt lgkmcnt(4)")
        else: k("s_waitcnt lgkmcnt(0)")
        for tl in range(4):
            d = ACC + 4 * tl
            c = "0" if ks == 0 else v(d, 4)
            k(f"v_mfma_f32_16x16x32_bf16 {v(d,4)}, {v(AF+16*(ks&1)+4*tl,4)}, {v(QF+4*ks,4)}, {c}")
    k(f"""s_mul_i32 s13, s{S_JT}, 14
    s_lshl_b32 s14, s{S_JB}, 1
    s_add_u32 s13, s13, s14
    s_lshl_b32 s13, s13, 10
    s_add_u32 s13, s13, {WBD}
    v_mul_f32 v{ACC}, v{ACC}, v{msk}""")
    for K in range(2):
        for mt in range(2):
            d = ACC + 4 * (2 * K + mt)
            k(f"""v_cvt_pk_bf16_f32 v{20+4*K+2*mt}, v{d}, v{d+1}
            v_cvt_pk_bf16_f32 v{20+4*K+2*mt+1}, v{d+2}, v{d+3}""")
        k(f"buffer_store_dwordx4 {v(20+4*K,4)}, v{l16}, s[48:51], s13 offen offset:{1024*K} sc1")
    k("s_endpgm")

def job_c(k):
    S_ID, S_PART, S_PB, S_OB, S_W, S_JT, S_G = 4, 5, 6, 8, 7, 12, 9
    lane, l16, va, va2, t0, t1, t2, vg = 1, 2, 3, 9, 4, 5, 6, 7
    QF = 20
    ACC = 132
    AF = 164
    k(f"""s_sub_u32 s{S_ID}, s2, {N_A+N_B+N_D}
    s_cmp_ge_u32 s{S_ID}, 49
    s_cselect_b32 s{S_PART}, 1, 0
    s_mul_i32 s13, s{S_PART}, 49
    s_sub_u32 s{S_ID}, s{S_ID}, s13""")
    div7(k, S_PB, S_OB, S_ID)
    wave_lane(k, S_W, lane, t0)
    table_ptr(k, 10, "tab_qj")
    srd(k, 52, 10, 28 * 14336)
    k(f"""v_lshlrev_b32 v{l16}, 4, v{lane}
    v_lshrrev_b32 v{t0}, 3, v{lane}
    v_mul_u32_u24 v{vg}, 896, v{t0}
    v_bfe_u32 v{t0}, v{lane}, 4, 1
    v_lshlrev_b32 v{t0}, 2, v{t0}
    v_and_b32 v{t1}, 7, v{lane}
    v_xor_b32 v{t0}, v{t0}, v{t1}
    v_lshl_add_u32 v{vg}, v{t0}, 4, v{vg}
    s_lshl_b32 s{S_JT}, s{S_OB}, 2
    s_add_u32 s{S_JT}, s{S_JT}, s{S_W}
    s_mul_i32 s13, s{S_JT}, 14336
    s_lshl_b32 s{S_G}, s{S_PB}, 7
    s_mul_i32 s14, s{S_W}, {8*896}
    s_add_u32 s{S_G}, s{S_G}, s14
    s_lshl_b32 s14, s{S_W}, 10
    s_mov_b32 m0, s14
    s_waitcnt lgkmcnt(0)
    s_cmp_eq_u32 s{S_PART}, 0
    s_cselect_b32 s14, s32, s34
    s_cselect_b32 s15, s33, s35""")
    srd(k, 56, 14, 448 * 896); srd(k, 48, 44, WS_BYTES)
    for i in range(14):
        if i: k(f"s_add_u32 s{S_G}, s{S_G}, {32*896}\ns_add_u32 m0, m0, 4096")
        k(f"buffer_load_dwordx4 v{vg}, s[56:59], s{S_G} offen lds")
        if i and i % 4 == 0: k("s_add_u32 s13, s13, 4096")
        k(f"buffer_load_dwordx4 {v(QF+4*i,4)}, v{l16}, s[52:55], s13 offen offset:{1024*(i%4)}")
    k(f"""v_lshrrev_b32 v{t0}, 4, v{lane}
    v_bfe_u32 v{t1}, v{lane}, 2, 2
    v_lshl_add_u32 v{t0}, v{t0}, 3, v{t1}
    v_lshlrev_b32 v{va}, 7, v{t0}
    v_and_b32 v{t0}, 3, v{lane}
    v_lshl_add_u32 v{va}, v{t0}, 4, v{va}
    v_bfe_u32 v{t0}, v{lane}, 3, 1
    v_lshl_add_u32 v{va}, v{t0}, 6, v{va}      ; K=0 address
    v_xor_b32 v{va2}, 64, v{va}                ; K=1 address""")
    def lda(ks, base):
        for K in range(2):
            for mt in range(2):
                for u in range(2):
                    k(f"ds_read_b64_tr_b16 {v(base+8*K+4*mt+2*u,2)}, v{(va,va2)[K]} offset:{ks*4096+u*512+8*mt}")
    k("s_waitcnt vmcnt(0)\ns_barrier")
    lda(0, AF)
    for ks in range(14):
        if ks + 1 < 14:
            lda(ks + 1, AF + 16 * ((ks + 1) & 1)); k("s_waitcnt lgkmcnt(8)")
        else: k("s_waitcnt lgkmcnt(0)")
        for tl in range(4):
            d = ACC + 4 * tl
            c = "0" if ks == 0 else v(d, 4)
            k(f"v_mfma_f32_16x16x32_bf16 {v(d,4)}, {v(AF+16*(ks&1)+4*tl,4)}, {v(QF+4*ks,4)}, {c}")
    k(f"""s_lshl_b32 s13, s{S_OB}, 1
    s_lshr_b32 s14, s{S_W}, 1
    s_add_u32 s13, s13, s14
    s_mul_i32 s13, s13, 56
    s_mul_i32 s14, s{S_PART}, 28
    s_add_u32 s13, s13, s14
    s_lshl_b32 s14, s{S_PB}, 2
    s_add_u32 s13, s13, s14
    s_lshl_b32 s13, s13, 10
    s_and_b32 s14, s{S_W}, 1
    s_lshl_b32 s14, s14, 8
    s_add_u32 s13, s13, s14
    s_add_u32 s13, s13, {WC}
    v_and_b32 v{t0}, 15, v{lane}
    v_lshlrev_b32 v{t0}, 4, v{t0}
    v_bfe_u32 v{t1}, v{lane}, 4, 1
    v_lshl_add_u32 v{t0}, v{t1}, 9, v{t0}
    v_lshrrev_b32 v{t1}, 5, v{lane}
    v_lshl_add_u32 v{t0}, v{t1}, 10, v{t0}""")
    for K in range(2):
        for mt in range(2):
            d = ACC + 4 * (2 * K + mt)
            k(f"""v_cvt_pk_bf16_f32 v{20+4*K+2*mt}, v{d}, v{d+1}
            v_cvt_pk_bf16_f32 v{20+4*K+2*mt+1}, v{d+2}, v{d+3}""")
        k(f"buffer_store_dwordx4 {v(20+4*K,4)}, v{t0}, s[48:51], s13 offen offset:{2048*K} sc1")
    k("s_endpgm")

def job_w(k):
    S_R, S_W, S_G = 4, 7, 9
    lane, l16, t0, t1, va, vo = 1, 2, 4, 5, 3, 6
    O = 20
    IMOFF = 15360
    k(f"s_sub_u32 s{S_R}, s2, {N_A+N_B+N_D+N_C}")
    wave_lane(k, S_W, lane, t0)
    k(f"""v_lshlrev_b32 v{l16}, 4, v{lane}
    s_mul_i32 s{S_G}, s{S_R}, 14400
    s_and_b32 s13, s{S_W}, 1
    s_lshl_b32 s13, s13, 13           ; (w&1)*8192
    s_add_u32 s{S_G}, s{S_G}, s13
    s_lshr_b32 s14, s{S_W}, 1
    s_mul_i32 s15, s14, {IMOFF}
    s_add_u32 s13, s13, s15
    s_mov_b32 m0, s13
    s_waitcnt lgkmcnt(0)
    s_cmp_eq_u32 s14, 0
    s_cselect_b32 s14, s18, s20
    s_cselect_b32 s15, s19, s21""")
    srd(k, 56, 14, 2048 * 450); srd(k, 48, 44, WS_BYTES)
    for i in range(7):
        if i == 4: k(f"s_add_u32 s{S_G}, s{S_G}, 4096\ns_add_u32 m0, m0, 4096")
        k(f"buffer_load_dwordx4 v{l16}, s[56:59], s{S_G} offen offset:{1024*(i%4)} lds")
    sk = k.label("w7")
    k(f"""s_bitcmp1_b32 s{S_W}, 0
    s_cbranch_scc1 {sk}
    buffer_load_dwordx4 v{l16}, s[56:59], s{S_G} offen offset:3072 lds
    {sk}:""")
    k(f"""v_and_b32 v{t0}, 7, v{lane}
    v_mul_u32_u24 v{va}, 1800, v{t0}
    v_lshrrev_b32 v{t1}, 3, v{lane}
    s_mul_i32 s13, s{S_W}, 56
    v_add_u32 v{t1}, s13, v{t1}          ; u for i=0
    v_lshlrev_b32 v{vo}, 13, v{t1}
    v_lshl_add_u32 v{vo}, v{t0}, 4, v{vo}
    v_lshl_add_u32 v{va}, v{t1}, 1, v{va}
    v_mov_b32 v{t0}, v{va}
    v_cmp_eq_u32 vcc, 0, v{t1}
    v_add_u32 v{t1}, 448, v{va}
    v_cndmask_b32 v{t0}, v{t0}, v{t1}, vcc
    s_lshl_b32 s13, s{S_R}, 7
    s_add_u32 s13, s13, {WT}
    s_waitcnt vmcnt(0)
    s_barrier""")
    H = 60
    def fin(i):
        for e in range(4):
            k(f"v_lshl_or_b32 v{O+4*i+e}, v{H+4*i+e}, 16, v{O+4*i+e}")
        k(f"buffer_store_dwordx4 {v(O+4*i,4)}, v{vo}, s[48:51], s13 offen sc1")
        if i < 6: k("s_add_u32 s13, s13, 0x10000")
    for i in range(7):
        ad = t0 if i == 0 else va
        for e in range(4):
            k(f"""ds_read_u16 v{O+4*i+e}, v{ad} offset:{e*450+16*i}
            ds_read_u16 v{H+4*i+e}, v{ad} offset:{IMOFF+e*450+16*i}""")
        if i >= 1:
            k(f"s_waitcnt lgkmcnt(8)"); fin(i - 1)
    k(f"s_waitcnt lgkmcnt(0)"); fin(6)
    k("s_endpgm")

def build_k1():
    k = Kernel("k1")
    prologue_ptrs(k)
    lb, ld, lc, lw, lx = (k.label(x) for x in "bdcwx")
    k(f"""s_cmp_ge_u32 s2, {N_A}
    s_cbranch_scc1 {lb}""")
    job_a(k)
    k(f"{lb}:\ns_cmp_ge_u32 s2, {N_A+N_B}\ns_cbranch_scc1 {ld}")
    job_b(k)
    k(f"{ld}:\ns_cmp_ge_u32 s2, {N_A+N_B+N_D}\ns_cbranch_scc1 {lc}")
    job_d(k)
    k(f"{lc}:\ns_cmp_ge_u32 s2, {N_A+N_B+N_D+N_C}\ns_cbranch_scc1 {lw}")
    job_c(k)
    lr_ = k.label("r")
    k(f"{lw}:\ns_cmp_ge_u32 s2, {K1_GRID-N_R}\ns_cbranch_scc1 {lr_}")
    job_w(k)
    k(f"{lr_}:\ns_cmp_ge_u32 s2, {K1_GRID}\ns_cbranch_scc1 {lx}")
    import k2
    k2.repack_job(k, K1_GRID - N_R)
    k(f"{lx}:\ns_endpgm")
    return k, dict(grid=K1_GRID, lds=K1_LDS, nv=208, na=0, ns=72)
```

```python
import sys
from common import *
import os, importlib
k1 = importlib.import_module(os.environ.get("K1", "k1n"))
kp2 = importlib.import_module(os.environ.get("KP", "kp5"))
from gen import assemble
if __name__ == "__main__":
    ks = []
    a_, i = k1.build_k1(); ks.append(("k1", a_, i))
    a_, i = kp2.build_kp(); ks.append(("kp", a_, i))
    path = sys.argv[1] if len(sys.argv) > 1 else "out3.s"
    assemble(ks, ["k1", "kp"], kp2.fft_table(), path)
```

```python
from asmlib import *
from layout import *
import numpy as np

def bf16bits(x):
    u = np.float32(x).view(np.uint32)
    return int((int(u) + 0x7fff + ((int(u) >> 16) & 1)) >> 16)
def f32bits(x):
    return int(np.float32(x).view(np.uint32))
def fhex(x):
    return "0x%08x" % f32bits(x)

def srd(k, dst, base, nbytes):
    k(f"""s_mov_b32 s{dst}, s{base}
    s_and_b32 s{dst+1}, s{base+1}, 0xffff
    s_mov_b32 s{dst+2}, {nbytes:#x}
    s_mov_b32 s{dst+3}, 0x20000""")

def table_ptr(k, dst, sym):
    k(f"""s_getpc_b64 s[{dst}:{dst+1}]
    s_add_u32 s{dst}, s{dst}, {sym}@rel32@lo+4
    s_addc_u32 s{dst+1}, s{dst+1}, {sym}@rel32@hi+12""")

def decode_cj(k, s_id, s_c, s_j, s_t):
    k(f"""s_lshr_b32 s{s_t}, s{s_id}, 3
    s_mul_i32 s{s_c}, s{s_t}, 37
    s_lshr_b32 s{s_c}, s{s_c}, 8
    s_mul_i32 s{s_j}, s{s_c}, 7
    s_sub_u32 s{s_j}, s{s_t}, s{s_j}
    s_lshl_b32 s{s_c}, s{s_c}, 3
    s_and_b32 s{s_t}, s{s_id}, 7
    s_add_u32 s{s_c}, s{s_c}, s{s_t}""")

def div7(k, s_q, s_r, s_x):
    k(f"""s_mul_i32 s{s_q}, s{s_x}, 147
    s_lshr_b32 s{s_q}, s{s_q}, 10
    s_mul_i32 s{s_r}, s{s_q}, 7
    s_sub_u32 s{s_r}, s{s_x}, s{s_r}""")
for _x in range(100): assert (_x*147) >> 10 == _x//7

def emit_lam(k, v_lre, v_lim, v_ldt, v_or, v_oi, t0, t1):
    k(f"""v_lshlrev_b32 v{v_lre}, 16, v{v_lre}
    v_lshlrev_b32 v{v_lim}, 16, v{v_lim}
    v_lshlrev_b32 v{v_ldt}, 16, v{v_ldt}
    v_mul_f32 v{t0}, {fhex(1.4426950408889634)}, v{v_ldt}
    v_exp_f32 v{t0}, v{t0}
    v_cvt_pk_bf16_f32 v{t0}, v{t0}, v{t0}
    v_and_b32 v{t0}, 0xffff0000, v{t0}
    v_mul_f32 v{t1}, v{t0}, v{v_lre}
    v_mul_f32 v{t1}, {fhex(1.4426950408889634)}, v{t1}
    v_exp_f32 v{t1}, v{t1}
    v_mul_f32 v{t0}, v{t0}, v{v_lim}
    v_mul_f32 v{t0}, {fhex(0.15915494309189535)}, v{t0}
    v_fract_f32 v{t0}, v{t0}
    v_cos_f32 v{v_or}, v{t0}
    v_sin_f32 v{v_oi}, v{t0}
    v_mul_f32 v{v_or}, v{v_or}, v{t1}
    v_mul_f32 v{v_oi}, v{v_oi}, v{t1}""")

def q_tables(qj=True):
    L = []
    for i in range(448): L.append(f".set qc{i},{bf16bits(np.sqrt(2/448)*np.cos(2*np.pi*i/448))}")
    L.append(f".set qc448,{bf16bits(1/np.sqrt(448))}")
    L.append(f".set qc449,{bf16bits(-1/np.sqrt(448))}")
    L.append(""".altmacro
.macro qe A1,A2,A3,A4,A5,A6,A7,A8
.short qc\\A1,qc\\A2,qc\\A3,qc\\A4,qc\\A5,qc\\A6,qc\\A7,qc\\A8
.endm
.p2align 8
.type tab_qj,@object
tab_qj:
.set jt,0
.rept 28
.set ks,0
.rept 14
.set ln,0
.rept 64
.set jj,jt*16+(ln&15)
.set dd,32*ks+8*(ln>>4)
.if jj==0
qe 448,448,448,448,448,448,448,448
.elseif jj==1
qe 448,449,448,449,448,449,448,449
.else
.set ff,jj>>1
.set bb,ff*dd+112*(jj&1)
qe %(bb%448),%((bb+ff)%448),%((bb+2*ff)%448),%((bb+3*ff)%448),%((bb+4*ff)%448),%((bb+5*ff)%448),%((bb+6*ff)%448),%((bb+7*ff)%448)
.endif
.set ln,ln+1
.endr
.set ks,ks+1
.endr
.set jt,jt+1
.endr
.p2align 8
.type tab_qd,@object
tab_qd:
.set jt,0
.rept 28
.set ks,0
.rept 14
.set ln,0
.rept 64
.set dd,jt*16+(ln&15)
.set ff,16*ks+4*(ln>>4)
.set bb,ff*dd
.if ff==0
qe 448,%(448+(dd&1)),%(dd%448),%((dd+112)%448),%((2*dd)%448),%((2*dd+112)%448),%((3*dd)%448),%((3*dd+112)%448)
.else
qe %(bb%448),%((bb+112)%448),%((bb+dd)%448),%((bb+dd+112)%448),%((bb+2*dd)%448),%((bb+2*dd+112)%448),%((bb+3*dd)%448),%((bb+3*dd+112)%448)
.endif
.set ln,ln+1
.endr
.set ks,ks+1
.endr
.set jt,jt+1
.endr
.noaltmacro""")
    t = "\n".join(L)
    if not qj:
        a = t.index(".p2align 8\n.type tab_qj"); b = t.index(".p2align 8\n.type tab_qd")
        t = t[:a] + t[b:]
    return t
```

```python
import sys
from common import *
import os, importlib
k1 = importlib.import_module(os.environ.get("K1", "k1n"))
kp2 = importlib.import_module(os.environ.get("KP", "kp5"))
from gen import assemble
if __name__ == "__main__":
    ks = []
    a_, i = k1.build_k1(); ks.append(("k1", a_, i))
    a_, i = kp2.build_kp(); ks.append(("kp", a_, i))
    if os.environ.get("FUSE"):
        ks[1][1].lines = ks[0][1].lines + ks[1][1].lines
        ks = ks[1:]
    path = sys.argv[1] if len(sys.argv) > 1 else "out3.s"
    assemble(ks, [n for n, _, _ in ks], kp2.fft_table(), path)
```
